```python
import torch

def _softmax(x, axis=-1):
    return torch.softmax(x, dim=axis)
def _gelu(x):
    return torch.nn.functional.gelu(x, approximate="tanh")
def _silu(x):
    return torch.nn.functional.silu(x)
def _sigmoid(x):
    return torch.sigmoid(x)
def _layernorm(x, axis=-1, eps=1e-5):
    m = x.mean(dim=axis, keepdim=True)
    v = x.var(dim=axis, keepdim=True, unbiased=False)
    return (x - m) / torch.sqrt(v + eps)
def _scatter_add(tgt, idx, src, axis=0):
    return tgt.clone().index_add_(axis, idx, src)
def _segment_sum(src, seg, n):
    out = torch.zeros((n,) + src.shape[1:], dtype=src.dtype)
    return out.index_add_(0, seg, src)
def _pad(x, pw):
    flat = tuple(v for pair in reversed(pw) for v in pair)
    return torch.nn.functional.pad(x, flat)

kernel_name = 'standalone__edge_featured_mpnn_egc__graph'

def setup_inputs():

    _w = (lambda a: (lambda t: t.to(torch.bfloat16) if t.is_floating_point() else t)(torch.as_tensor(a)))
    N, deg, D, De = 12500, 32, 128, max(16, 1)
    E = N * deg
    return {
        "x": _w((lambda *s: torch.randn(*s, dtype=torch.bfloat16) * 0.1)(N, D)),
        "e_attr": _w((lambda *s: torch.randn(*s, dtype=torch.bfloat16) * 0.1)(E, De)),
        "src": _w((lambda lo, hi, *s: torch.randint(lo, hi, s))(0, N, E).to(torch.int64)),
        "dst": _w((lambda lo, hi, *s: torch.randint(lo, hi, s))(0, N, E).to(torch.int64)),
        "u_w": _w((lambda *s: torch.randn(*s, dtype=torch.bfloat16) * 0.05)(D, D)),
        "v_w": _w((lambda *s: torch.randn(*s, dtype=torch.bfloat16) * 0.05)(D, D)),
        "g_w": _w((lambda *s: torch.randn(*s, dtype=torch.bfloat16) * 0.1)(2 * D + De, D)),
    }

def reference(x, e_attr, src, dst, u_w, v_w, g_w):
    N, D = x.shape
    g_in = torch.concatenate([x[dst], x[src], e_attr], axis=-1)
    eta = _sigmoid(g_in @ g_w)
    hv = x @ v_w
    msg = eta * hv[src]
    agg = _segment_sum(msg, dst, N)
    return _silu(x @ u_w + agg)
```

```python
import sys

N = 12500
E = 400000
NPAD = 12544
CH = 2048
NW = 196
NB = 1024
OROW = 1028
T1 = 0
T2 = T1 + NPAD * 512
RS2 = 12560 * 2
T3 = T2 + 128 * RS2
T4 = T3 + NPAD * 256
RR = T4 + 4096
OO = RR + NW * CH * 4
WS_END = OO + NW * OROW * 4 + 256
M2 = 703687442
NLOG2E = 0xBFB8AA3B

out = []
def e(s=""):
    out.append(s)
def L(name):
    out.append(name + ":")

def srd(d, lo, hi, nbytes):
    e(f"  s_mov_b32 s{d}, s{lo}")
    e(f"  s_and_b32 s{d+1}, s{hi}, 0xffff")
    e(f"  s_mov_b32 s{d+2}, {nbytes}")
    e(f"  s_mov_b32 s{d+3}, 0x00020000")

def wave_scan(x, t):
    for ctrl in ("row_shr:1", "row_shr:2", "row_shr:4", "row_shr:8"):
        e(f"  v_mov_b32 v{t}, 0")
        e("  s_nop 1")
        e(f"  v_mov_b32_dpp v{t}, v{x} {ctrl} row_mask:0xf bank_mask:0xf")
        e(f"  v_add_u32 v{x}, v{x}, v{t}")
    e(f"  v_mov_b32 v{t}, 0")
    e("  s_nop 1")
    e(f"  v_mov_b32_dpp v{t}, v{x} row_bcast:15 row_mask:0xa bank_mask:0xf")
    e(f"  v_add_u32 v{x}, v{x}, v{t}")
    e(f"  v_mov_b32 v{t}, 0")
    e("  s_nop 1")
    e(f"  v_mov_b32_dpp v{t}, v{x} row_bcast:31 row_mask:0xc bank_mask:0xf")
    e(f"  v_add_u32 v{x}, v{x}, v{t}")

K0_LDS = 2 * 128 * 288
LIST_CAP = NW * 16 + 16
L_LIST0 = 0
L_LIST1 = L_LIST0 + LIST_CAP * 4
L_OH = L_LIST1 + LIST_CAP * 4
L_OH = (L_OH + 15) & ~15
L_S = L_OH + 25 * 16
L_WT = L_S + 4 * 17 * 48
K1_LDS = L_WT + 16
RBS = 528
assert 2 * 16 * RBS <= L_OH

hdr = open("standalone__edge_featured_mpnn_egc__graph.s.ref").read().split("\n")
for line in hdr:
    if line.startswith("; @launch"):
        break
    e(line)
e(f"; @launch kernel=mpnn_prep_kernel grid=(393,1,1) block=(256,1,1) lds={K0_LDS}")
e(f"; @launch kernel=mpnn_main_kernel grid=({NB},1,1) block=(256,1,1) lds={K1_LDS}")
e('.amdgcn_target "amdgcn-amd-amdhsa--gfx950"')
e(".text")

e(".globl mpnn_prep_kernel")
e(".p2align 8")
e(".type mpnn_prep_kernel,@function")
L("mpnn_prep_kernel")
e("  s_cmp_ge_u32 s2, 393")
e("  s_cbranch_scc1 K0_DONE")
e("  s_load_dwordx4 s[4:7], s[0:1], 0")
e("  s_load_dwordx4 s[8:11], s[0:1], 16")
e("  s_load_dwordx4 s[12:15], s[0:1], 32")
e("  s_load_dwordx2 s[16:17], s[0:1], 48")
e("  s_load_dwordx2 s[18:19], s[0:1], 72")
e("  s_waitcnt lgkmcnt(0)")
srd(20, 18, 19, WS_END)
e("  s_cmp_lt_u32 s2, 196")
e("  s_cbranch_scc1 K0_GEMM")
e("  s_cmp_lt_u32 s2, 392")
e("  s_cbranch_scc1 K0_BIN")
srd(24, 16, 17, 272 * 256)
e("  v_lshrrev_b32 v1, 1, v0")
e("  v_and_b32 v2, 1, v0")
e("  v_lshlrev_b32 v3, 11, v2")
e("  v_lshl_add_u32 v3, v1, 1, v3")
e("  v_add_u32 v3, 65536, v3")
for jj in range(8):
    e(f"  buffer_load_ushort v{8+jj}, v3, s[24:27], 0 offen offset:{jj*256}")
e(f"  s_mov_b32 s28, {NLOG2E}")
e("  v_lshlrev_b32 v4, 5, v1")
e("  v_lshl_add_u32 v4, v2, 4, v4")
e(f"  v_add_u32 v4, {T4}, v4")
e("  s_waitcnt vmcnt(0)")
for jj in range(8):
    e(f"  v_lshlrev_b32 v{8+jj}, 16, v{8+jj}")
    e(f"  v_mul_f32 v{8+jj}, s28, v{8+jj}")
for r in range(4):
    e(f"  v_cvt_pk_bf16_f32 v{16+r}, v{8+2*r}, v{9+2*r}")
e("  buffer_store_dwordx4 v[16:19], v4, s[20:23], 0 offen")
e("  s_endpgm")

L("K0_BIN")
e("  s_sub_u32 s3, s2, 196")
srd(24, 8, 9, E * 4)
srd(28, 10, 11, E * 4)
e("  s_lshl_b32 s32, s3, 13")
e("  v_lshlrev_b32 v1, 5, v0")
e("  buffer_load_dwordx4 v[4:7], v1, s[28:31], s32 offen")
e("  buffer_load_dwordx4 v[8:11], v1, s[28:31], s32 offen offset:16")
e("  buffer_load_dwordx4 v[12:15], v1, s[24:27], s32 offen")
e("  buffer_load_dwordx4 v[16:19], v1, s[24:27], s32 offen offset:16")
BH = 0
BWT = 4352
BREC = 4608
for r in range(4):
    e(f"  v_mov_b32 v{20+r}, 0")
e("  v_lshlrev_b32 v2, 4, v0")
e("  ds_write_b128 v2, v[20:23]")
e("  ds_write_b128 v2, v[20:23] offset:4096")
e("  s_lshl_b32 s33, s3, 11")
e(f"  s_sub_u32 s33, {E}, s33")
e("  s_min_u32 s33, s33, 2048")
e("  s_lshr_b32 s34, s33, 3")
e(f"  s_mov_b32 s35, {M2}")
e("  v_mov_b32 v3, 1")
e("  s_waitcnt lgkmcnt(0)")
e("  s_barrier")
e("  s_waitcnt vmcnt(0)")
e("  v_cmp_gt_u32 vcc, s34, v0")
e("  s_and_saveexec_b64 s[36:37], vcc")
e("  s_cbranch_execz K0_B1")
for k in range(8):
    e(f"  v_lshrrev_b32 v{24+k}, 1, v{4+k}")
    e(f"  v_mul_hi_u32 v{24+k}, v{24+k}, s35")
    e(f"  v_lshlrev_b32 v{32+k}, 2, v{24+k}")
    e(f"  ds_add_rtn_u32 v{40+k}, v{32+k}, v3")
L("K0_B1")
e("  s_mov_b64 exec, s[36:37]")
e("  s_waitcnt lgkmcnt(0)")
e("  s_barrier")
e("  ds_read_b128 v[48:51], v2")
e("  s_waitcnt lgkmcnt(0)")
e("  v_add_u32 v52, v48, v49")
e("  v_add_u32 v53, v52, v50")
e("  v_add_u32 v54, v53, v51")
e("  v_mov_b32 v55, v54")
wave_scan(55, 56)
e("  v_lshrrev_b32 v57, 6, v0")
e("  v_lshlrev_b32 v58, 2, v57")
e("  v_and_b32 v59, 63, v0")
e("  v_cmp_eq_u32 vcc, 63, v59")
e("  s_and_saveexec_b64 s[38:39], vcc")
e(f"  ds_write_b32 v58, v55 offset:{BWT}")
e("  s_mov_b64 exec, s[38:39]")
e("  s_waitcnt lgkmcnt(0)")
e("  s_barrier")
e("  v_mov_b32 v60, 0")
e(f"  ds_read_b128 v[60:63], v60 offset:{BWT}")
e("  s_waitcnt lgkmcnt(0)")
e("  v_cmp_lt_u32 vcc, 0, v57")
e("  s_nop 1")
e("  v_cndmask_b32 v60, 0, v60, vcc")
e("  v_cmp_lt_u32 vcc, 1, v57")
e("  s_nop 1")
e("  v_cndmask_b32 v61, 0, v61, vcc")
e("  v_cmp_lt_u32 vcc, 2, v57")
e("  s_nop 1")
e("  v_cndmask_b32 v62, 0, v62, vcc")
e("  v_add3_u32 v60, v60, v61, v62")
e("  v_add_u32 v60, v60, v55")
e("  v_sub_u32 v64, v60, v54")
e("  v_add_u32 v65, v64, v48")
e("  v_add_u32 v66, v64, v52")
e("  v_add_u32 v67, v64, v53")
e("  ds_write_b128 v2, v[64:67]")
e(f"  s_mul_i32 s40, s3, {OROW*4}")
e(f"  s_add_u32 s40, s40, {OO}")
e("  buffer_store_dwordx4 v[64:67], v2, s[20:23], s40 offen")
e("  v_cmp_eq_u32 vcc, 255, v0")
e("  s_and_saveexec_b64 s[38:39], vcc")
e("  s_cbranch_execz K0_B2")
e("  buffer_store_dword v60, v2, s[20:23], s40 offen offset:16")
L("K0_B2")
e("  s_mov_b64 exec, s[38:39]")
e("  s_waitcnt lgkmcnt(0)")
e("  s_barrier")
e("  s_mov_b64 exec, s[36:37]")
e("  v_cmp_gt_u32 vcc, s34, v0")
e("  s_and_saveexec_b64 s[36:37], vcc")
e("  s_cbranch_execz K0_B3")
for k in range(8):
    e(f"  ds_read_b32 v{48+k}, v{32+k}")
e("  v_lshlrev_b32 v1, 3, v0")
e("  s_movk_i32 s41, 6250")
for k in range(8):
    e(f"  v_mul_u32_u24 v{56+k}, s41, v{24+k}")
    e(f"  v_add_u32 v{56+k}, 1023, v{56+k}")
    e(f"  v_lshrrev_b32 v{56+k}, 10, v{56+k}")
    e(f"  v_lshlrev_b32 v{56+k}, 1, v{56+k}")
    e(f"  v_sub_u32 v{56+k}, v{4+k}, v{56+k}")
    e(f"  v_lshl_or_b32 v{56+k}, v{12+k}, 18, v{56+k}")
    e(f"  v_add_u32 v{64+k}, {k}, v1")
    e(f"  v_lshl_or_b32 v{56+k}, v{64+k}, 7, v{56+k}")
e("  s_waitcnt lgkmcnt(0)")
for k in range(8):
    e(f"  v_add_lshl_u32 v{48+k}, v{48+k}, v{40+k}, 2")
    e(f"  ds_write_b32 v{48+k}, v{56+k} offset:{BREC}")
L("K0_B3")
e("  s_mov_b64 exec, s[36:37]")
e("  s_waitcnt lgkmcnt(0)")
e("  s_barrier")
e("  v_lshlrev_b32 v1, 5, v0")
e(f"  ds_read_b128 v[4:7], v1 offset:{BREC}")
e(f"  ds_read_b128 v[8:11], v1 offset:{BREC+16}")
e(f"  s_add_u32 s32, s32, {RR}")
e("  s_waitcnt lgkmcnt(0)")
e("  buffer_store_dwordx4 v[4:7], v1, s[20:23], s32 offen")
e("  buffer_store_dwordx4 v[8:11], v1, s[20:23], s32 offen offset:16")
e("  s_endpgm")

L("K0_GEMM")
e("  s_and_b32 s3, s2, 1")
e("  s_lshr_b32 s33, s2, 1")
e("  s_lshl_b32 s34, s3, 15")
e("  s_add_u32 s16, s16, s34")
e("  s_addc_u32 s17, s17, 0")
srd(24, 16, 17, 32768)
e("  s_cmp_eq_u32 s3, 0")
e("  s_cselect_b32 s34, s12, s14")
e("  s_cselect_b32 s35, s13, s15")
srd(28, 34, 35, 32768)
srd(36, 4, 5, N * 256)
e("  v_lshlrev_b32 v1, 4, v0")
for it in range(8):
    e(f"  s_mov_b32 s40, {it*4096}")
    e(f"  buffer_load_dwordx4 v[{64+4*it}:{67+4*it}], v1, s[24:27], s40 offen")
for it in range(8):
    e(f"  s_mov_b32 s40, {it*4096}")
    e(f"  buffer_load_dwordx4 v[{96+4*it}:{99+4*it}], v1, s[28:31], s40 offen")
e("  v_and_b32 v2, 15, v0")
e("  v_bfe_u32 v3, v0, 4, 2")
e("  v_lshrrev_b32 v4, 6, v0")
e("  s_lshl_b32 s41, s33, 7")
e("  v_lshlrev_b32 v5, 5, v4")
e("  v_add3_u32 v5, v5, v2, s41")
e("  v_lshlrev_b32 v6, 8, v5")
e("  v_lshl_add_u32 v6, v3, 4, v6")
e("  v_add_u32 v7, 4096, v6")
for tau in range(2):
    for s in range(4):
        r = 32 + 16 * tau + 4 * s
        e(f"  buffer_load_dwordx4 v[{r}:{r+3}], v{6+tau}, s[36:39], 0 offen offset:{s*64}")
e("  v_lshrrev_b32 v8, 4, v0")
e("  v_mul_u32_u24 v8, 288, v8")
e("  v_lshl_add_u32 v8, v2, 4, v8")
e("  v_add_u32 v9, 36864, v8")
e("  s_waitcnt vmcnt(16)")
for it in range(8):
    e(f"  ds_write_b128 v8, v[{64+4*it}:{67+4*it}] offset:{it*4608}")
e("  s_waitcnt vmcnt(8)")
for it in range(8):
    e(f"  ds_write_b128 v9, v[{96+4*it}:{99+4*it}] offset:{it*4608}")
e("  v_lshrrev_b32 v10, 2, v2")
e("  v_lshl_add_u32 v10, v3, 3, v10")
e("  v_mul_u32_u24 v10, 288, v10")
e("  v_and_b32 v11, 3, v2")
e("  v_lshl_add_u32 v10, v11, 3, v10")
e("  v_add_u32 v11, 36864, v10")
e(f"  s_mov_b32 s42, {NLOG2E}")
e("  v_lshlrev_b32 v12, 5, v4")
e("  v_lshl_add_u32 v12, v3, 2, v12")
e("  v_add_u32 v12, s41, v12")
e("  s_waitcnt lgkmcnt(0)")
e("  s_barrier")
e("  s_waitcnt vmcnt(0)")
e("  s_cmp_eq_u32 s3, 1")
e("  s_cbranch_scc1 K0_GEMM1")

FR = 64
AC = 128
ST = 160
def gemm_mat(mat, hh):
    base = 10 + mat
    for jl in range(4):
        j = 4 * hh + jl
        for s in range(4):
            r = FR + 16 * jl + 4 * s
            off = s * 32 * 288 + j * 32
            e(f"  ds_read_b64_tr_b16 v[{r}:{r+1}], v{base} offset:{off}")
            e(f"  ds_read_b64_tr_b16 v[{r+2}:{r+3}], v{base} offset:{off+4*288}")
    e("  s_waitcnt lgkmcnt(0)")
    for s in range(4):
        for tau in range(2):
            for jl in range(4):
                a = AC + 16 * tau + 4 * jl
                xr = 32 + 16 * tau + 4 * s
                fr = FR + 16 * jl + 4 * s
                c = "0" if s == 0 else f"v[{a}:{a+3}]"
                e(f"  v_mfma_f32_16x16x32_bf16 v[{a}:{a+3}], v[{xr}:{xr+3}], v[{fr}:{fr+3}], {c}")
    e("  s_nop 7")
    e("  s_nop 1")

def scale_acc():
    for r in range(32):
        e(f"  v_mul_f32 v{AC+r}, s42, v{AC+r}")

e(f"  s_mov_b32 s43, {RS2}")
e("  v_mul_lo_u32 v13, v2, s43")
e("  v_lshl_add_u32 v13, v12, 1, v13")
e(f"  v_add_u32 v13, {T2}, v13")
e("  v_lshlrev_b32 v14, 8, v12")
e("  v_lshl_add_u32 v14, v2, 3, v14")
e(f"  v_add_u32 v14, {T3}, v14")
e("  v_add_u32 v15, 4096, v14")
for hh in range(2):
    gemm_mat(0, hh)
    scale_acc()
    for tau in range(2):
        for jl in range(4):
            a = AC + 16 * tau + 4 * jl
            st = ST + 8 * tau + 2 * jl
            e(f"  v_cvt_pk_bf16_f32 v{st}, v{a}, v{a+1}")
            e(f"  v_cvt_pk_bf16_f32 v{st+1}, v{a+2}, v{a+3}")
    for tau in range(2):
        for jl in range(4):
            j = 4 * hh + jl
            st = ST + 8 * tau + 2 * jl
            e(f"  s_mov_b32 s44, {16*j*RS2 + 32*tau}")
            e(f"  buffer_store_dwordx2 v[{st}:{st+1}], v13, s[20:23], s44 offen")
    gemm_mat(1, hh)
    for tau in range(2):
        for i in range(4):
            a = AC + 16 * tau + i
            st = ST + 16 + 8 * tau + 2 * i
            e(f"  v_cvt_pk_bf16_f32 v{st}, v{a}, v{a+4}")
            e(f"  v_cvt_pk_bf16_f32 v{st+1}, v{a+8}, v{a+12}")
    for tau in range(2):
        for i in range(4):
            st = ST + 16 + 8 * tau + 2 * i
            e(f"  buffer_store_dwordx2 v[{st}:{st+1}], v{14+tau}, s[20:23], 0 offen offset:{i*256+hh*128}")
e("  s_endpgm")

L("K0_GEMM1")
e("  v_lshlrev_b32 v14, 9, v12")
e("  v_lshl_add_u32 v14, v2, 4, v14")
e("  v_add_u32 v15, 8192, v14")
for hh in range(2):
    gemm_mat(0, hh)
    scale_acc()
    for tau in range(2):
        for i in range(4):
            a = AC + 16 * tau + i
            st = ST + 16 * tau + 4 * i
            e(f"  v_cvt_pk_bf16_f32 v{st}, v{a}, v{a+4}")
            e(f"  v_cvt_pk_bf16_f32 v{st+1}, v{a+8}, v{a+12}")
    gemm_mat(1, hh)
    for tau in range(2):
        for i in range(4):
            a = AC + 16 * tau + i
            st = ST + 16 * tau + 4 * i
            e(f"  v_cvt_pk_bf16_f32 v{st+2}, v{a}, v{a+4}")
            e(f"  v_cvt_pk_bf16_f32 v{st+3}, v{a+8}, v{a+12}")
    for tau in range(2):
        for i in range(4):
            st = ST + 16 * tau + 4 * i
            e(f"  buffer_store_dwordx4 v[{st}:{st+3}], v{14+tau}, s[20:23], 0 offen offset:{i*512+hh*256}")
    e("  s_nop 1")
L("K0_DONE")
e("  s_endpgm")

e(".globl mpnn_main_kernel")
e(".p2align 8")
e(".type mpnn_main_kernel,@function")
L("mpnn_main_kernel")
e(f"  s_cmp_ge_u32 s2, {NB}")
e("  s_cbranch_scc1 K1_DONE")
e("  s_load_dwordx2 s[4:5], s[0:1], 8")
e("  s_load_dwordx2 s[6:7], s[0:1], 56")
e("  s_load_dwordx2 s[8:9], s[0:1], 72")
e("  s_mul_i32 s3, s2, 6250")
e("  s_add_u32 s10, s3, 1023")
e("  s_lshr_b32 s10, s10, 10")
e("  s_add_u32 s11, s3, 7273")
e("  s_lshr_b32 s11, s11, 10")
e("  s_sub_u32 s11, s11, s10")
e("  s_lshl_b32 s11, s11, 1")
e("  s_lshl_b32 s10, s10, 1")
V_N, V_Q, V_T = 1, 2, 3
e("  v_and_b32 v1, 15, v0")
e("  v_bfe_u32 v2, v0, 4, 2")
e("  v_readfirstlane_b32 s12, v0")
e("  s_nop 3")
e("  s_lshr_b32 s12, s12, 6")
e("  s_and_b32 s13, s12, 1")
e("  s_lshr_b32 s14, s12, 1")
e("  s_waitcnt lgkmcnt(0)")
srd(16, 8, 9, WS_END)
srd(20, 4, 5, E * 32)
srd(24, 6, 7, N * 256)
e(f"  v_mul_u32_u24 v3, {OROW*4}, v0")
e("  s_lshl_b32 s28, s2, 2")
e(f"  s_add_u32 s28, s28, {OO}")
e("  v_mov_b32 v4, 0")
e("  v_mov_b32 v5, 0")
e(f"  v_cmp_gt_u32 vcc, {NW}, v0")
e("  s_and_saveexec_b64 s[30:31], vcc")
e("  s_cbranch_execz K1_P0")
e("  buffer_load_dwordx2 v[4:5], v3, s[16:19], s28 offen")
L("K1_P0")
e("  s_mov_b64 exec, s[30:31]")
BF = 16
ACC = 32
e("  s_lshl_b32 s29, s13, 6")
e("  v_add_u32 v6, s29, v1")
e("  v_lshlrev_b32 v7, 5, v6")
e("  v_lshl_add_u32 v7, v2, 4, v7")
e(f"  v_add_u32 v7, {T4}, v7")
e(f"  s_mov_b32 s32, {RS2}")
e("  v_mul_lo_u32 v8, v6, s32")
e("  v_lshl_add_u32 v8, v2, 4, v8")
e("  s_lshl_b32 s33, s10, 1")
e(f"  s_add_u32 s33, s33, {T2 - 32}")
e("  v_add_u32 v8, s33, v8")
e("  v_cmp_gt_u32 vcc, 2, v2")
e("  v_mov_b32 v9, 512")
e(f"  v_mov_b32 v10, {16*RS2}")
e("  v_cndmask_b32 v7, v8, v7, vcc")
e("  v_cndmask_b32 v9, v10, v9, vcc")
for jl in range(4):
    e(f"  buffer_load_dwordx4 v[{BF+4*jl}:{BF+4*jl+3}], v7, s[16:19], 0 offen")
    if jl < 3:
        e("  v_add_u32 v7, v7, v9")
e("  s_cmp_lg_u32 s14, 0")
e("  s_cbranch_scc1 K1_P1")
e("  v_lshlrev_b32 v6, 10, v2")
e("  v_lshl_add_u32 v6, v1, 3, v6")
e("  s_lshl_b32 s33, s10, 8")
e("  s_lshl_b32 s34, s13, 7")
e("  s_add_u32 s33, s33, s34")
e(f"  s_add_u32 s33, s33, {T3}")
for i in range(4):
    e(f"  buffer_load_dwordx2 v[{48+2*i}:{49+2*i}], v6, s[16:19], s33 offen offset:{i*256}")
L("K1_P1")
e("  v_lshrrev_b32 v6, 2, v0")
e("  v_and_b32 v7, 3, v0")
e("  v_lshlrev_b32 v7, 1, v7")
e("  v_add_u32 v7, 8, v7")
e("  v_mov_b32 v9, 0x3f80")
e("  v_mov_b32 v10, 0x3f800000")
e("  v_cmp_eq_u32 vcc, v6, v7")
e("  s_nop 1")
e("  v_cndmask_b32 v8, 0, v9, vcc")
e("  v_add_u32 v7, 1, v7")
e("  v_cmp_eq_u32 vcc, v6, v7")
e("  s_nop 1")
e("  v_cndmask_b32 v8, v8, v10, vcc")
e("  v_lshlrev_b32 v6, 2, v0")
e("  v_cmp_gt_u32 vcc, 100, v0")
e("  s_and_saveexec_b64 s[30:31], vcc")
e(f"  ds_write_b32 v6, v8 offset:{L_OH}")
e("  s_mov_b64 exec, s[30:31]")
for r in range(4):
    e(f"  v_mov_b32 v{12+r}, 0")
e("  v_lshlrev_b32 v6, 4, v0")
e("  v_cmp_gt_u32 vcc, 204, v0")
e("  s_and_saveexec_b64 s[30:31], vcc")
e(f"  ds_write_b128 v6, v[12:15] offset:{L_S}")
e("  s_mov_b64 exec, s[30:31]")
V_LOFF = 56
V_Q16 = 57
V_OHC = 58
V_SC = 59
V_SR = 60
V_LO = 61
V_LR = 62
V_ONE = 63
V_ZERO = 12
e("  s_lshl_b32 s33, s13, 8")
e(f"  v_lshlrev_b32 v{V_LOFF}, 4, v1")
e(f"  v_add_u32 v{V_LOFF}, s33, v{V_LOFF}")
e(f"  v_lshlrev_b32 v{V_Q16}, 4, v2")
e(f"  v_lshlrev_b32 v{V_OHC}, 7, v2")
e(f"  v_sub_u32 v{V_OHC}, {L_OH+384}, v{V_OHC}")
e("  s_mul_i32 s33, s12, 816")
e(f"  s_add_u32 s33, s33, {L_S}")
e(f"  v_lshlrev_b32 v{V_SC}, 1, v1")
e(f"  v_add_u32 v{V_SC}, s33, v{V_SC}")
e(f"  v_mul_u32_u24 v{V_SR}, 48, v1")
e(f"  v_lshl_add_u32 v{V_SR}, v2, 3, v{V_SR}")
e(f"  v_add_u32 v{V_SR}, s33, v{V_SR}")
e(f"  v_mov_b32 v{V_ONE}, 0x3f80")
e("  s_mov_b32 s40, 0xfffffe00")
e("  s_mov_b32 s41, 0xffff0000")
e("  s_cmp_lg_u32 s14, 0")
e("  s_cbranch_scc1 K1_P2")
e("  s_waitcnt vmcnt(0)")
for i in range(4):
    for jl in range(4):
        src = 48 + 2 * i + jl // 2
        if jl % 2 == 0:
            e(f"  v_lshlrev_b32 v{ACC+4*jl+i}, 16, v{src}")
        else:
            e(f"  v_and_b32 v{ACC+4*jl+i}, s41, v{src}")
e("  s_branch K1_ROUND")
L("K1_P2")
for r in range(16):
    e(f"  v_mov_b32 v{ACC+r}, 0")

L("K1_ROUND")
e("  s_waitcnt vmcnt(0)")
e("  v_sub_u32 v6, v5, v4")
e("  v_min_u32 v7, 16, v6")
e("  v_lshlrev_b32 v8, 13, v0")
e("  v_lshl_add_u32 v8, v4, 2, v8")
e(f"  s_mov_b32 s33, {RR}")
for k in range(4):
    e(f"  buffer_load_dwordx4 v[{64+4*k}:{67+4*k}], v8, s[16:19], s33 offen offset:{16*k}")
e("  v_mov_b32 v9, v7")
wave_scan(9, 10)
e("  v_cmp_lt_u32 vcc, 16, v6")
e("  s_cmp_lg_u64 vcc, 0")
e("  s_cselect_b32 s34, 0x80000000, 0")
e("  v_or_b32 v10, s34, v9")
e("  s_lshl_b32 s35, s12, 2")
e("  v_mov_b32 v11, s35")
e("  v_and_b32 v13, 63, v0")
e("  v_cmp_eq_u32 vcc, 63, v13")
e("  s_and_saveexec_b64 s[30:31], vcc")
e(f"  ds_write_b32 v11, v10 offset:{L_WT}")
e("  s_mov_b64 exec, s[30:31]")
e("  s_waitcnt lgkmcnt(0)")
e("  s_barrier")
e(f"  ds_read_b128 v[80:83], v{V_ZERO} offset:{L_WT}")
e("  s_waitcnt lgkmcnt(0)")
e("  v_or3_b32 v84, v80, v81, v82")
e("  v_or_b32 v84, v84, v83")
e("  s_nop 0")
e("  v_readfirstlane_b32 s36, v84")
for r in range(4):
    e(f"  v_and_b32 v{80+r}, 0x7fffffff, v{80+r}")
e("  v_add_u32 v84, v80, v81")
e("  v_add3_u32 v84, v84, v82, v83")
e("  s_nop 0")
e("  v_readfirstlane_b32 s37, v84")
e("  v_readfirstlane_b32 s42, v80")
e("  v_readfirstlane_b32 s43, v81")
e("  v_readfirstlane_b32 s44, v82")
e("  s_nop 3")
e("  s_cmp_gt_u32 s12, 0")
e("  s_cselect_b32 s42, s42, 0")
e("  s_cmp_gt_u32 s12, 1")
e("  s_cselect_b32 s43, s43, 0")
e("  s_cmp_gt_u32 s12, 2")
e("  s_cselect_b32 s44, s44, 0")
e("  s_add_u32 s42, s42, s43")
e("  s_add_u32 s42, s42, s44")
e("  v_sub_u32 v9, v9, v7")
e("  v_add_u32 v9, s42, v9")
e("  v_lshlrev_b32 v9, 2, v9")
e("  v_lshlrev_b32 v11, 16, v0")
e("  v_add_u32 v10, s37, v0")
e("  v_lshlrev_b32 v10, 2, v10")
e("  v_mov_b32 v13, 16")
e("  v_cmp_gt_u32 vcc, 16, v0")
e("  s_and_saveexec_b64 s[30:31], vcc")
e(f"  ds_write_b32 v10, v13 offset:{L_LIST0}")
e(f"  ds_write_b32 v10, v{V_ZERO} offset:{L_LIST1}")
e("  s_mov_b64 exec, s[30:31]")
e("  s_waitcnt vmcnt(0)")
for j in range(16):
    e(f"  v_cmp_lt_u32 vcc, {j}, v7")
    e("  s_and_b64 exec, exec, vcc")
    e("  s_cbranch_execz K1_LD")
    e(f"  v_lshrrev_b32 v13, 9, v{64+j}")
    e("  v_and_b32 v13, s40, v13")
    e(f"  v_and_or_b32 v13, v{64+j}, 31, v13")
    e(f"  v_bfe_u32 v14, v{64+j}, 7, 11")
    e("  v_lshl_add_u32 v14, v14, 5, v11")
    e(f"  ds_write_b32 v9, v13 offset:{L_LIST0+4*j}")
    e(f"  ds_write_b32 v9, v14 offset:{L_LIST1+4*j}")
L("K1_LD")
e("  s_mov_b64 exec, -1")
e("  v_add_u32 v4, v4, v7")
e("  s_waitcnt lgkmcnt(0)")
e("  s_barrier")
e("  s_add_u32 s38, s37, 15")
e("  s_lshr_b32 s38, s38, 4")
e("  s_mov_b32 s39, s14")
e("  s_cmp_ge_u32 s39, s38")
e("  s_cbranch_scc1 K1_RDONE")
e("  s_lshl_b32 s33, s14, 6")
e(f"  v_lshlrev_b32 v{V_LO}, 2, v1")
e(f"  v_add_u32 v{V_LO}, s33, v{V_LO}")
e(f"  v_lshlrev_b32 v{V_LR}, 4, v2")
e(f"  v_add_u32 v{V_LR}, s33, v{V_LR}")

G = [64, 80]
A = [96, 100]
SA = [104, 105]
SF = 106
W0, W1 = 108, 109
RW = 110
Z = 114
PK = 130
TT = 132

def stage_a(p):
    e(f"  ds_read_b32 v{W0}, v{V_LO} offset:{L_LIST0}")
    e(f"  ds_read_b32 v{W1}, v{V_LO} offset:{L_LIST1}")
    e(f"  ds_read_b128 v[{RW}:{RW+3}], v{V_LR} offset:{L_LIST0}")
    e(f"  v_add_u32 v{V_LO}, 128, v{V_LO}")
    e(f"  v_add_u32 v{V_LR}, 128, v{V_LR}")
    e("  s_waitcnt lgkmcnt(0)")
    for i in range(4):
        e(f"  v_and_or_b32 v{RW+i}, v{RW+i}, s40, v{V_LOFF}")
        e(f"  buffer_load_dwordx4 v[{G[p]+4*i}:{G[p]+4*i+3}], v{RW+i}, s[16:19], 0 offen")
    e(f"  v_add_u32 v{W1}, v{W1}, v{V_Q16}")
    e(f"  v_and_b32 v{W0}, 31, v{W0}")
    e(f"  v_mad_u32_u24 v{SA[p]}, v{W0}, 48, v{V_SC}")
    e(f"  v_lshl_add_u32 v{W0}, v{W0}, 4, v{V_OHC}")
    e("  s_mov_b64 exec, 0xffffffff")
    e(f"  buffer_load_dwordx4 v[{A[p]}:{A[p]+3}], v{W1}, s[20:23], 0 offen")
    e("  s_not_b64 exec, exec")
    e(f"  ds_read_b128 v[{A[p]}:{A[p]+3}], v{W0}")
    e("  s_mov_b64 exec, -1")

def stage_b(p, nvm):
    e("  s_mov_b64 exec, 0xffff")
    e(f"  ds_write_b16 v{SA[p]}, v{V_ONE}")
    e("  s_mov_b64 exec, -1")
    e(f"  ds_read_b64 v[{SF}:{SF+1}], v{V_SR}")
    e("  s_mov_b64 exec, 0xffff")
    e(f"  ds_write_b16 v{SA[p]}, v{V_ZERO}")
    e("  s_mov_b64 exec, -1")
    e(f"  s_waitcnt vmcnt({nvm}) lgkmcnt(0)")
    for jl in range(4):
        for i in range(4):
            src = G[p] + 4 * i + jl // 2
            if jl % 2 == 0:
                e(f"  v_lshlrev_b32 v{Z+4*jl+i}, 16, v{src}")
            else:
                e(f"  v_and_b32 v{Z+4*jl+i}, s41, v{src}")
    e("  s_nop 1")
    for jl in range(4):
        z = Z + 4 * jl
        e(f"  v_mfma_f32_16x16x32_bf16 v[{z}:{z+3}], v[{A[p]}:{A[p]+3}], v[{BF+4*jl}:{BF+4*jl+3}], v[{z}:{z+3}]")
    e("  s_nop 7")
    for jl in range(4):
        z = Z + 4 * jl
        for i in range(4):
            e(f"  v_exp_f32 v{z+i}, v{z+i}")
        for i in range(4):
            src = G[p] + 4 * i + 2 + jl // 2
            if jl % 2 == 0:
                e(f"  v_lshlrev_b32 v{TT+i}, 16, v{src}")
            else:
                e(f"  v_and_b32 v{TT+i}, s41, v{src}")
        for i in range(4):
            e(f"  v_add_f32 v{z+i}, 1.0, v{z+i}")
        for i in range(4):
            e(f"  v_rcp_f32 v{z+i}, v{z+i}")
        e("  s_nop 0")
        for i in range(4):
            e(f"  v_mul_f32 v{z+i}, v{z+i}, v{TT+i}")
        e(f"  v_cvt_pk_bf16_f32 v{z}, v{z}, v{z+1}")
        e(f"  v_cvt_pk_bf16_f32 v{z+1}, v{z+2}, v{z+3}")
        e("  s_nop 1")
        a = ACC + 4 * jl
        e(f"  v_mfma_f32_16x16x16_bf16 v[{a}:{a+3}], v[{SF}:{SF+1}], v[{z}:{z+1}], v[{a}:{a+3}]")

stage_a(0)
L("K1_LOOP")
e("  s_add_u32 s39, s39, 2")
e("  s_cmp_ge_u32 s39, s38")
e("  s_cbranch_scc1 K1_T0")
stage_a(1)
stage_b(0, 5)
e("  s_add_u32 s39, s39, 2")
e("  s_cmp_ge_u32 s39, s38")
e("  s_cbranch_scc1 K1_T1")
stage_a(0)
stage_b(1, 5)
e("  s_branch K1_LOOP")
L("K1_T0")
stage_b(0, 0)
e("  s_branch K1_RDONE")
L("K1_T1")
stage_b(1, 0)
L("K1_RDONE")
e("  s_barrier")
e("  s_cmp_lt_i32 s36, 0")
e("  s_cbranch_scc1 K1_ROUND")
e("  s_nop 7")
e(f"  v_mul_u32_u24 v6, {4*RBS}, v2")
e("  v_lshl_add_u32 v6, v1, 2, v6")
e(f"  s_mul_i32 s33, s14, {16*RBS}")
e("  s_lshl_b32 s34, s13, 8")
e("  s_add_u32 s33, s33, s34")
e("  v_add_u32 v6, s33, v6")
for jl in range(4):
    for i in range(4):
        e(f"  ds_write_b32 v6, v{ACC+4*jl+i} offset:{i*RBS+jl*64}")
e("  s_waitcnt lgkmcnt(0)")
e("  s_barrier")
e("  v_lshrrev_b32 v6, 4, v0")
e(f"  v_mul_u32_u24 v7, {RBS}, v6")
e("  v_lshl_add_u32 v7, v1, 5, v7")
e("  ds_read_b128 v[64:67], v7")
e("  ds_read_b128 v[68:71], v7 offset:16")
e(f"  ds_read_b128 v[72:75], v7 offset:{16*RBS}")
e(f"  ds_read_b128 v[76:79], v7 offset:{16*RBS+16}")
e(f"  s_mov_b32 s33, {NLOG2E}")
e("  s_waitcnt lgkmcnt(0)")
for r in range(8):
    e(f"  v_add_f32 v{64+r}, v{64+r}, v{72+r}")
for r in range(8):
    e(f"  v_mul_f32 v{72+r}, s33, v{64+r}")
for r in range(8):
    e(f"  v_exp_f32 v{72+r}, v{72+r}")
e("  s_nop 0")
for r in range(8):
    e(f"  v_add_f32 v{72+r}, 1.0, v{72+r}")
for r in range(8):
    e(f"  v_rcp_f32 v{72+r}, v{72+r}")
e("  s_nop 0")
for r in range(8):
    e(f"  v_mul_f32 v{64+r}, v{64+r}, v{72+r}")
for r in range(4):
    e(f"  v_cvt_pk_bf16_f32 v{80+r}, v{64+2*r}, v{65+2*r}")
e("  v_lshlrev_b32 v7, 8, v6")
e("  v_lshl_add_u32 v7, v1, 4, v7")
e("  s_lshl_b32 s33, s10, 8")
e("  v_cmp_gt_u32 vcc, s11, v6")
e("  s_and_saveexec_b64 s[30:31], vcc")
e("  s_cbranch_execz K1_DONE")
e("  buffer_store_dwordx4 v[80:83], v7, s[24:27], s33 offen")
L("K1_DONE")
e("  s_endpgm")

e('.section .rodata,"a"')
for name, nv in (("mpnn_prep_kernel", 192), ("mpnn_main_kernel", 140)):
    e(".p2align 6")
    e(f".amdhsa_kernel {name}")
    e(f"  .amdhsa_next_free_vgpr {nv}")
    e("  .amdhsa_next_free_sgpr 64")
    e(f"  .amdhsa_accum_offset {nv}")
    e("  .amdhsa_group_segment_fixed_size 0")
    e("  .amdhsa_kernarg_size 80")
    e("  .amdhsa_user_sgpr_count 2")
    e("  .amdhsa_user_sgpr_kernarg_segment_ptr 1")
    e("  .amdhsa_system_sgpr_workgroup_id_x 1")
    e(".end_amdhsa_kernel")

path = sys.argv[1] if len(sys.argv) > 1 else "standalone__edge_featured_mpnn_egc__graph.s"
open(path, "w").write("\n".join(out) + "\n")
print("wrote", path, "WS_END", WS_END, "K1_LDS", K1_LDS)
```

```python
import sys, os
NW1 = int(os.environ.get('NW1', '0'))
NW2 = int(os.environ.get('NW2', '0'))
X = os.environ.get('X', '')

N = 12500
E = 400000
NPAD = 12544
CH = 4096
NW = 98
EPT = 16
TK = 20
NG0 = 196 + NW + 1
NB = 1024
OROW = 4100
T1 = 0
T2 = T1 + NPAD * 512
RS2 = 12560 * 2
T3 = T2 + 128 * RS2
T4 = T3 + NPAD * 256
RR = T4 + 4096
OO = RR + NW * CH * 4
WS_END = OO + NW * OROW * 4 + 256
M2 = 703687442
NLOG2E = 0xBFB8AA3B

out = []
def e(s=""):
    out.append(s)
def L(name):
    out.append(name + ":")

def srd(d, lo, hi, nbytes):
    e(f"  s_mov_b32 s{d}, s{lo}")
    e(f"  s_and_b32 s{d+1}, s{hi}, 0xffff")
    e(f"  s_mov_b32 s{d+2}, {nbytes}")
    e(f"  s_mov_b32 s{d+3}, 0x00020000")

def wave_scan(x, t):
    for ctrl in ("row_shr:1", "row_shr:2", "row_shr:4", "row_shr:8"):
        e(f"  v_mov_b32 v{t}, 0")
        e("  s_nop 1")
        e(f"  v_mov_b32_dpp v{t}, v{x} {ctrl} row_mask:0xf bank_mask:0xf")
        e(f"  v_add_u32 v{x}, v{x}, v{t}")
    e(f"  v_mov_b32 v{t}, 0")
    e("  s_nop 1")
    e(f"  v_mov_b32_dpp v{t}, v{x} row_bcast:15 row_mask:0xa bank_mask:0xf")
    e(f"  v_add_u32 v{x}, v{x}, v{t}")
    e(f"  v_mov_b32 v{t}, 0")
    e("  s_nop 1")
    e(f"  v_mov_b32_dpp v{t}, v{x} row_bcast:31 row_mask:0xc bank_mask:0xf")
    e(f"  v_add_u32 v{x}, v{x}, v{t}")

K0_LDS = 2 * 128 * 288
CAP = NW * TK
LIST_N = CAP + 256
L_LIST0 = 0
L_LIST1 = L_LIST0 + LIST_N * 4
L_EA = L_LIST1 + LIST_N * 4
L_OH = L_EA + 16384
L_S = L_OH + 25 * 16
L_WT = L_S + 4 * 17 * 48
K1_LDS = L_WT + 32
RBS = 528
assert 2 * 16 * RBS <= L_OH

hdr = open("standalone__edge_featured_mpnn_egc__graph.s.ref").read().split("\n")
for line in hdr:
    if line.startswith("; @launch"):
        break
    e(line)
e(f"; @launch kernel=mpnn_prep_kernel grid=({NG0},1,1) block=(256,1,1) lds={K0_LDS}")
e(f"; @launch kernel=mpnn_main_kernel grid=({NB},1,1) block=(256,1,1) lds={K1_LDS}")
e('.amdgcn_target "amdgcn-amd-amdhsa--gfx950"')
e(".text")

e(".globl mpnn_prep_kernel")
e(".p2align 8")
e(".type mpnn_prep_kernel,@function")
L("mpnn_prep_kernel")
e(f"  s_cmp_ge_u32 s2, {NG0}")
e("  s_cbranch_scc1 K0_DONE")
e("  s_load_dwordx4 s[4:7], s[0:1], 0")
e("  s_load_dwordx4 s[8:11], s[0:1], 16")
e("  s_load_dwordx4 s[12:15], s[0:1], 32")
e("  s_load_dwordx2 s[16:17], s[0:1], 48")
e("  s_load_dwordx2 s[18:19], s[0:1], 72")
e("  s_waitcnt lgkmcnt(0)")
srd(20, 18, 19, WS_END)
e("  s_cmp_lt_u32 s2, 196")
e("  s_cbranch_scc1 K0_GEMM")
e(f"  s_cmp_lt_u32 s2, {196+NW}")
e("  s_cbranch_scc1 K0_BIN")
srd(24, 16, 17, 272 * 256)
e("  v_lshrrev_b32 v1, 1, v0")
e("  v_and_b32 v2, 1, v0")
e("  v_lshlrev_b32 v3, 11, v2")
e("  v_lshl_add_u32 v3, v1, 1, v3")
e("  v_add_u32 v3, 65536, v3")
for jj in range(8):
    e(f"  buffer_load_ushort v{8+jj}, v3, s[24:27], 0 offen offset:{jj*256}")
e(f"  s_mov_b32 s28, {NLOG2E}")
e("  v_lshlrev_b32 v4, 5, v1")
e("  v_lshl_add_u32 v4, v2, 4, v4")
e(f"  v_add_u32 v4, {T4}, v4")
e("  s_waitcnt vmcnt(0)")
for jj in range(8):
    e(f"  v_lshlrev_b32 v{8+jj}, 16, v{8+jj}")
    e(f"  v_mul_f32 v{8+jj}, s28, v{8+jj}")
for r in range(4):
    e(f"  v_cvt_pk_bf16_f32 v{16+r}, v{8+2*r}, v{9+2*r}")
e("  buffer_store_dwordx4 v[16:19], v4, s[20:23], 0 offen")
e("  s_endpgm")

L("K0_BIN")
e("  s_sub_u32 s3, s2, 196")
srd(24, 8, 9, E * 4)
srd(28, 10, 11, E * 4)
e("  s_lshl_b32 s32, s3, 14")
e("  v_lshlrev_b32 v1, 6, v0")
VD, VS, VB, VK, VR, VT = 4, 20, 36, 52, 68, 84
for k in range(4):
    e(f"  buffer_load_dwordx4 v[{VD+4*k}:{VD+4*k+3}], v1, s[28:31], s32 offen offset:{16*k}")
for k in range(4):
    e(f"  buffer_load_dwordx4 v[{VS+4*k}:{VS+4*k+3}], v1, s[24:27], s32 offen offset:{16*k}")
BWT = 16640
BREC = 16896
for r in range(4):
    e(f"  v_mov_b32 v{100+r}, 0")
e("  v_lshlrev_b32 v2, 4, v0")
e("  ds_write_b128 v2, v[100:103]")
e("  ds_write_b128 v2, v[100:103] offset:4096")
e("  ds_write_b128 v2, v[100:103] offset:8192")
e("  ds_write_b128 v2, v[100:103] offset:12288")
e("  ds_write_b128 v2, v[100:103] offset:16384")
e("  s_mov_b32 s42, 1374390")
e("  s_lshl_b32 s33, s3, 12")
e(f"  s_sub_u32 s33, {E}, s33")
e(f"  s_min_u32 s33, s33, {CH}")
e("  s_lshr_b32 s34, s33, 4")
e(f"  s_mov_b32 s35, {M2}")
e("  s_movk_i32 s41, 6250")
e("  v_mov_b32 v3, 1")
e("  s_waitcnt lgkmcnt(0)")
e("  s_barrier")
e("  s_waitcnt vmcnt(0)")
e("  v_cmp_gt_u32 vcc, s34, v0")
e("  s_and_saveexec_b64 s[36:37], vcc")
e("  s_cbranch_execz K0_B1")
for k in range(EPT):
    e(f"  v_lshrrev_b32 v{VB+k}, 1, v{VD+k}")
    e(f"  v_mul_hi_u32 v{VB+k}, v{VB+k}, s35")
    e(f"  v_mul_hi_u32 v{VR+k}, v{VS+k}, s42")
    e(f"  v_lshl_add_u32 v{VK+k}, v{VB+k}, 2, v{VR+k}")
    e(f"  v_lshlrev_b32 v{VK+k}, 2, v{VK+k}")
    e(f"  ds_add_rtn_u32 v{VR+k}, v{VK+k}, v3")
L("K0_B1")
e("  s_mov_b64 exec, s[36:37]")
e("  s_waitcnt lgkmcnt(0)")
e("  s_barrier")
e("  v_lshlrev_b32 v1, 6, v0")
for k in range(4):
    e(f"  ds_read_b128 v[{128+4*k}:{131+4*k}], v1 offset:{16*k}")
e("  s_waitcnt lgkmcnt(0)")
e("  v_mov_b32 v144, 0")
e("  v_mov_b32 v145, v128")
for r in range(2, 16):
    e(f"  v_add_u32 v{144+r}, v{143+r}, v{127+r}")
e("  v_add_u32 v112, v159, v143")
e("  v_mov_b32 v113, v112")
wave_scan(113, 114)
e("  v_lshrrev_b32 v115, 6, v0")
e("  v_lshlrev_b32 v114, 2, v115")
e("  v_and_b32 v116, 63, v0")
e("  v_cmp_eq_u32 vcc, 63, v116")
e("  s_and_saveexec_b64 s[38:39], vcc")
e(f"  ds_write_b32 v114, v113 offset:{BWT}")
e("  s_mov_b64 exec, s[38:39]")
e("  s_waitcnt lgkmcnt(0)")
e("  s_barrier")
e("  v_mov_b32 v116, 0")
e(f"  ds_read_b128 v[116:119], v116 offset:{BWT}")
e("  s_waitcnt lgkmcnt(0)")
e("  v_cmp_lt_u32 vcc, 0, v115")
e("  s_nop 1")
e("  v_cndmask_b32 v116, 0, v116, vcc")
e("  v_cmp_lt_u32 vcc, 1, v115")
e("  s_nop 1")
e("  v_cndmask_b32 v117, 0, v117, vcc")
e("  v_cmp_lt_u32 vcc, 2, v115")
e("  s_nop 1")
e("  v_cndmask_b32 v118, 0, v118, vcc")
e("  v_add3_u32 v116, v116, v117, v118")
e("  v_add_u32 v116, v116, v113")
e("  v_sub_u32 v117, v116, v112")
for r in range(16):
    e(f"  v_add_u32 v{144+r}, v{144+r}, v117")
for k in range(4):
    e(f"  ds_write_b128 v1, v[{144+4*k}:{147+4*k}] offset:{16*k}")
e(f"  s_mul_i32 s40, s3, {OROW*4}")
e(f"  s_add_u32 s40, s40, {OO}")
for k in range(4):
    e(f"  buffer_store_dwordx4 v[{144+4*k}:{147+4*k}], v1, s[20:23], s40 offen offset:{16*k}")
e("  v_cmp_eq_u32 vcc, 255, v0")
e("  s_and_saveexec_b64 s[38:39], vcc")
e("  s_cbranch_execz K0_B2")
e("  buffer_store_dword v116, v1, s[20:23], s40 offen offset:64")
L("K0_B2")
e("  s_mov_b64 exec, s[38:39]")
e("  s_waitcnt lgkmcnt(0)")
e("  s_barrier")
e("  s_mov_b64 exec, s[36:37]")
e("  v_cmp_gt_u32 vcc, s34, v0")
e("  s_and_saveexec_b64 s[36:37], vcc")
e("  s_cbranch_execz K0_B3")
for k in range(EPT):
    e(f"  ds_read_b32 v{VT+k}, v{VK+k}")
e("  v_lshlrev_b32 v1, 4, v0")
for k in range(EPT):
    e(f"  v_mul_u32_u24 v{VB+k}, s41, v{VB+k}")
    e(f"  v_add_u32 v{VB+k}, 1023, v{VB+k}")
    e(f"  v_lshrrev_b32 v{VB+k}, 10, v{VB+k}")
    e(f"  v_lshlrev_b32 v{VB+k}, 1, v{VB+k}")
    e(f"  v_sub_u32 v{VB+k}, v{VD+k}, v{VB+k}")
    e(f"  v_lshl_or_b32 v{VB+k}, v{VS+k}, 18, v{VB+k}")
    e(f"  v_add_u32 v{VD+k}, {k}, v1")
    e(f"  v_lshl_or_b32 v{VB+k}, v{VD+k}, 6, v{VB+k}")
e("  s_waitcnt lgkmcnt(0)")
for k in range(EPT):
    e(f"  v_add_lshl_u32 v{VT+k}, v{VT+k}, v{VR+k}, 2")
    e(f"  ds_write_b32 v{VT+k}, v{VB+k} offset:{BREC}")
L("K0_B3")
e("  s_mov_b64 exec, s[36:37]")
e("  s_waitcnt lgkmcnt(0)")
e("  s_barrier")
e("  v_lshlrev_b32 v1, 4, v0")
for k in range(4):
    e(f"  ds_read_b128 v[{4+4*k}:{7+4*k}], v1 offset:{BREC+4096*k}")
e(f"  s_add_u32 s32, s32, {RR}")
e("  s_waitcnt lgkmcnt(0)")
for k in range(4):
    e(f"  buffer_store_dwordx4 v[{4+4*k}:{7+4*k}], v1, s[20:23], s32 offen")
    e("  s_add_u32 s32, s32, 4096")
e("  s_endpgm")

L("K0_GEMM")
e("  s_and_b32 s3, s2, 1")
e("  s_lshr_b32 s33, s2, 1")
e("  s_lshl_b32 s34, s3, 15")
e("  s_add_u32 s16, s16, s34")
e("  s_addc_u32 s17, s17, 0")
srd(24, 16, 17, 32768)
e("  s_cmp_eq_u32 s3, 0")
e("  s_cselect_b32 s34, s12, s14")
e("  s_cselect_b32 s35, s13, s15")
srd(28, 34, 35, 32768)
srd(36, 4, 5, N * 256)
e("  v_lshlrev_b32 v1, 4, v0")
for it in range(8):
    e(f"  s_mov_b32 s40, {it*4096}")
    e(f"  buffer_load_dwordx4 v[{64+4*it}:{67+4*it}], v1, s[24:27], s40 offen")
for it in range(8):
    e(f"  s_mov_b32 s40, {it*4096}")
    e(f"  buffer_load_dwordx4 v[{96+4*it}:{99+4*it}], v1, s[28:31], s40 offen")
e("  v_and_b32 v2, 15, v0")
e("  v_bfe_u32 v3, v0, 4, 2")
e("  v_lshrrev_b32 v4, 6, v0")
e("  s_lshl_b32 s41, s33, 7")
e("  v_lshlrev_b32 v5, 5, v4")
e("  v_add3_u32 v5, v5, v2, s41")
e("  v_lshlrev_b32 v6, 8, v5")
e("  v_lshl_add_u32 v6, v3, 4, v6")
e("  v_add_u32 v7, 4096, v6")
for tau in range(2):
    for s in range(4):
        r = 32 + 16 * tau + 4 * s
        e(f"  buffer_load_dwordx4 v[{r}:{r+3}], v{6+tau}, s[36:39], 0 offen offset:{s*64}")
e("  v_lshrrev_b32 v8, 4, v0")
e("  v_mul_u32_u24 v8, 288, v8")
e("  v_lshl_add_u32 v8, v2, 4, v8")
e("  v_add_u32 v9, 36864, v8")
e("  s_waitcnt vmcnt(16)")
for it in range(8):
    e(f"  ds_write_b128 v8, v[{64+4*it}:{67+4*it}] offset:{it*4608}")
e("  s_waitcnt vmcnt(8)")
for it in range(8):
    e(f"  ds_write_b128 v9, v[{96+4*it}:{99+4*it}] offset:{it*4608}")
e("  v_lshrrev_b32 v10, 2, v2")
e("  v_lshl_add_u32 v10, v3, 3, v10")
e("  v_mul_u32_u24 v10, 288, v10")
e("  v_and_b32 v11, 3, v2")
e("  v_lshl_add_u32 v10, v11, 3, v10")
e("  v_add_u32 v11, 36864, v10")
e(f"  s_mov_b32 s42, {NLOG2E}")
e("  v_lshlrev_b32 v12, 5, v4")
e("  v_lshl_add_u32 v12, v3, 2, v12")
e("  v_add_u32 v12, s41, v12")
e("  s_waitcnt lgkmcnt(0)")
e("  s_barrier")
e("  s_waitcnt vmcnt(0)")
e("  s_cmp_eq_u32 s3, 1")
e("  s_cbranch_scc1 K0_GEMM1")

FR = 64
AC = 128
ST = 160
def gemm_mat(mat, hh):
    base = 10 + mat
    for jl in range(4):
        j = 4 * hh + jl
        for s in range(4):
            r = FR + 16 * jl + 4 * s
            off = s * 32 * 288 + j * 32
            e(f"  ds_read_b64_tr_b16 v[{r}:{r+1}], v{base} offset:{off}")
            e(f"  ds_read_b64_tr_b16 v[{r+2}:{r+3}], v{base} offset:{off+4*288}")
    e("  s_waitcnt lgkmcnt(0)")
    for s in range(4):
        for tau in range(2):
            for jl in range(4):
                a = AC + 16 * tau + 4 * jl
                xr = 32 + 16 * tau + 4 * s
                fr = FR + 16 * jl + 4 * s
                c = "0" if s == 0 else f"v[{a}:{a+3}]"
                e(f"  v_mfma_f32_16x16x32_bf16 v[{a}:{a+3}], v[{xr}:{xr+3}], v[{fr}:{fr+3}], {c}")
    e("  s_nop 7")
    e("  s_nop 1")

def scale_acc():
    for r in range(32):
        e(f"  v_mul_f32 v{AC+r}, s42, v{AC+r}")

e(f"  s_mov_b32 s43, {RS2}")
e("  v_mul_lo_u32 v13, v2, s43")
e("  v_lshl_add_u32 v13, v12, 1, v13")
e(f"  v_add_u32 v13, {T2}, v13")
e("  v_lshlrev_b32 v14, 8, v12")
e("  v_lshl_add_u32 v14, v2, 3, v14")
e(f"  v_add_u32 v14, {T3}, v14")
e("  v_add_u32 v15, 4096, v14")
for hh in range(2):
    gemm_mat(0, hh)
    scale_acc()
    for tau in range(2):
        for jl in range(4):
            a = AC + 16 * tau + 4 * jl
            st = ST + 8 * tau + 2 * jl
            e(f"  v_cvt_pk_bf16_f32 v{st}, v{a}, v{a+1}")
            e(f"  v_cvt_pk_bf16_f32 v{st+1}, v{a+2}, v{a+3}")
    for tau in range(2):
        for jl in range(4):
            j = 4 * hh + jl
            st = ST + 8 * tau + 2 * jl
            e(f"  s_mov_b32 s44, {16*j*RS2 + 32*tau}")
            e(f"  buffer_store_dwordx2 v[{st}:{st+1}], v13, s[20:23], s44 offen")
    gemm_mat(1, hh)
    for tau in range(2):
        for i in range(4):
            a = AC + 16 * tau + i
            st = ST + 16 + 8 * tau + 2 * i
            e(f"  v_cvt_pk_bf16_f32 v{st}, v{a}, v{a+4}")
            e(f"  v_cvt_pk_bf16_f32 v{st+1}, v{a+8}, v{a+12}")
    for tau in range(2):
        for i in range(4):
            st = ST + 16 + 8 * tau + 2 * i
            e(f"  buffer_store_dwordx2 v[{st}:{st+1}], v{14+tau}, s[20:23], 0 offen offset:{i*256+hh*128}")
e("  s_endpgm")

L("K0_GEMM1")
e("  v_lshlrev_b32 v14, 9, v12")
e("  v_lshl_add_u32 v14, v2, 4, v14")
e("  v_add_u32 v15, 8192, v14")
for hh in range(2):
    gemm_mat(0, hh)
    scale_acc()
    for tau in range(2):
        for i in range(4):
            a = AC + 16 * tau + i
            st = ST + 16 * tau + 4 * i
            e(f"  v_cvt_pk_bf16_f32 v{st}, v{a}, v{a+4}")
            e(f"  v_cvt_pk_bf16_f32 v{st+1}, v{a+8}, v{a+12}")
    gemm_mat(1, hh)
    for tau in range(2):
        for i in range(4):
            a = AC + 16 * tau + i
            st = ST + 16 * tau + 4 * i
            e(f"  v_cvt_pk_bf16_f32 v{st+2}, v{a}, v{a+4}")
            e(f"  v_cvt_pk_bf16_f32 v{st+3}, v{a+8}, v{a+12}")
    for tau in range(2):
        for i in range(4):
            st = ST + 16 * tau + 4 * i
            e(f"  buffer_store_dwordx4 v[{st}:{st+3}], v{14+tau}, s[20:23], 0 offen offset:{i*512+hh*256}")
    e("  s_nop 1")
L("K0_DONE")
e("  s_endpgm")

e(".globl mpnn_main_kernel")
e(".p2align 8")
e(".type mpnn_main_kernel,@function")
L("mpnn_main_kernel")
e(f"  s_cmp_ge_u32 s2, {NB}")
e("  s_cbranch_scc1 K1_DONE")
e("  s_setprio 3")
e("  s_mov_b32 s15, s2")
e("  s_and_b32 s3, s2, 7")
e("  s_lshl_b32 s3, s3, 7")
e("  s_lshr_b32 s2, s2, 3")
e("  s_add_u32 s2, s2, s3")
e("  s_load_dwordx2 s[4:5], s[0:1], 8")
e("  s_load_dwordx2 s[6:7], s[0:1], 56")
e("  s_load_dwordx2 s[8:9], s[0:1], 72")
if 'T' in X:
    e("  s_load_dwordx2 s[80:81], s[0:1], 64")
    e("  s_memtime s[70:71]")
    e("  s_memrealtime s[78:79]")
e("  s_mul_i32 s3, s2, 6250")
e("  s_add_u32 s10, s3, 1023")
e("  s_lshr_b32 s10, s10, 10")
e("  s_add_u32 s11, s3, 7273")
e("  s_lshr_b32 s11, s11, 10")
e("  s_sub_u32 s11, s11, s10")
e("  s_lshl_b32 s11, s11, 1")
e("  s_lshl_b32 s10, s10, 1")
V_N, V_Q, V_T = 1, 2, 3
e("  v_and_b32 v1, 15, v0")
e("  v_bfe_u32 v2, v0, 4, 2")
e("  v_readfirstlane_b32 s12, v0")
e("  s_nop 3")
e("  s_lshr_b32 s12, s12, 6")
e("  s_and_b32 s13, s12, 1")
e("  s_lshr_b32 s14, s12, 1")
e("  s_waitcnt lgkmcnt(0)")
srd(16, 8, 9, WS_END)
srd(20, 4, 5, E * 32)
srd(24, 6, 7, N * 256)
e(f"  v_mul_u32_u24 v3, {OROW*4}, v0")
e("  s_lshl_b32 s28, s2, 4")
e(f"  s_add_u32 s28, s28, {OO}")
e("  v_mov_b32 v4, 0")
e("  v_mov_b32 v5, 0")
e("  v_mov_b32 v11, 0")
e("  v_mov_b32 v96, 0")
e("  v_mov_b32 v97, 0")
e(f"  v_cmp_gt_u32 vcc, {NW}, v0")
e("  s_and_saveexec_b64 s[30:31], vcc")
e("  s_cbranch_execz K1_P0")
e("  buffer_load_dwordx2 v[4:5], v3, s[16:19], s28 offen")
e("  buffer_load_dwordx2 v[96:97], v3, s[16:19], s28 offen offset:8")
e("  buffer_load_dword v11, v3, s[16:19], s28 offen offset:16")
L("K1_P0")
e("  s_mov_b64 exec, s[30:31]")
if 'P' in X:
    e("  s_mul_i32 s33, s2, 12544")
    e("  v_lshlrev_b32 v6, 4, v0")
    for i in range(3):
        e(f"  buffer_load_dwordx4 v[{56+4*i}:{59+4*i}], v6, s[20:23], s33 offen")
        e("  s_add_u32 s33, s33, 4096")
    e("  v_cmp_gt_u32 vcc, 16, v0")
    e("  s_and_saveexec_b64 s[30:31], vcc")
    e("  s_cbranch_execz K1_P0B")
    e("  buffer_load_dwordx4 v[68:71], v6, s[20:23], s33 offen")
    L("K1_P0B")
    e("  s_mov_b64 exec, s[30:31]")
BF = 16
ACC = 32
e("  s_lshl_b32 s29, s13, 6")
e("  v_add_u32 v6, s29, v1")
e("  v_lshlrev_b32 v7, 5, v6")
e("  v_lshl_add_u32 v7, v2, 4, v7")
e(f"  v_add_u32 v7, {T4}, v7")
e(f"  s_mov_b32 s32, {RS2}")
e("  v_mul_lo_u32 v8, v6, s32")
e("  v_lshl_add_u32 v8, v2, 4, v8")
e("  s_lshl_b32 s33, s10, 1")
e(f"  s_add_u32 s33, s33, {T2 - 32}")
e("  v_add_u32 v8, s33, v8")
e("  v_cmp_gt_u32 vcc, 2, v2")
e("  v_mov_b32 v9, 512")
e(f"  v_mov_b32 v10, {16*RS2}")
e("  v_cndmask_b32 v7, v8, v7, vcc")
e("  v_cndmask_b32 v9, v10, v9, vcc")
for jl in range(4):
    e(f"  buffer_load_dwordx4 v[{BF+4*jl}:{BF+4*jl+3}], v7, s[16:19], 0 offen")
    if jl < 3:
        e("  v_add_u32 v7, v7, v9")
e("  s_cmp_lg_u32 s14, 0")
e("  s_cbranch_scc1 K1_P1")
e("  v_lshlrev_b32 v6, 10, v2")
e("  v_lshl_add_u32 v6, v1, 3, v6")
e("  s_lshl_b32 s33, s10, 8")
e("  s_lshl_b32 s34, s13, 7")
e("  s_add_u32 s33, s33, s34")
e(f"  s_add_u32 s33, s33, {T3}")
for i in range(4):
    e(f"  buffer_load_dwordx2 v[{106+2*i}:{107+2*i}], v6, s[16:19], s33 offen offset:{i*256}")
L("K1_P1")
e("  s_lshr_b32 s53, s2, 3")
e(f"  s_mul_i32 s53, s53, {(NW1+NW2)*4096}")
e("  v_lshlrev_b32 v121, 4, v0")
for i in range(NW1):
    e("  buffer_load_dwordx4 v[72:75], v121, s[16:19], s53 offen")
    e("  s_add_u32 s53, s53, 4096")
e("  v_lshrrev_b32 v6, 2, v0")
e("  v_and_b32 v7, 3, v0")
e("  v_lshlrev_b32 v7, 1, v7")
e("  v_add_u32 v7, 8, v7")
e("  v_mov_b32 v9, 0x3f80")
e("  v_mov_b32 v10, 0x3f800000")
e("  v_cmp_eq_u32 vcc, v6, v7")
e("  s_nop 1")
e("  v_cndmask_b32 v8, 0, v9, vcc")
e("  v_add_u32 v7, 1, v7")
e("  v_cmp_eq_u32 vcc, v6, v7")
e("  s_nop 1")
e("  v_cndmask_b32 v8, v8, v10, vcc")
e("  v_lshlrev_b32 v6, 2, v0")
e("  v_cmp_gt_u32 vcc, 100, v0")
e("  s_and_saveexec_b64 s[30:31], vcc")
e(f"  ds_write_b32 v6, v8 offset:{L_OH}")
e("  s_mov_b64 exec, s[30:31]")
for r in range(4):
    e(f"  v_mov_b32 v{12+r}, 0")
e("  v_lshlrev_b32 v6, 4, v0")
e("  v_cmp_gt_u32 vcc, 204, v0")
e("  s_and_saveexec_b64 s[30:31], vcc")
e(f"  ds_write_b128 v6, v[12:15] offset:{L_S}")
e("  s_mov_b64 exec, s[30:31]")
V_LOFF = 48
V_Q16 = 49
V_OHC = 50
V_SC = 51
V_SR = 52
V_LO = 53
V_LR = 54
V_ONE = 55
V_ZERO = 12
V_MASK = 15
V_AB = 122
V_AI = 123
V_DI = 124
V_H16 = 125
W0, W1 = 100, 101
e("  s_lshl_b32 s33, s13, 8")
e(f"  v_lshlrev_b32 v{V_LOFF}, 4, v1")
if 'H' not in X: e(f"  v_add_u32 v{V_LOFF}, s33, v{V_LOFF}")
e(f"  v_lshlrev_b32 v{V_OHC}, 7, v2")
e(f"  v_sub_u32 v{V_OHC}, {L_OH+384}, v{V_OHC}")
e("  v_cmp_gt_u32 vcc, 2, v2")
e(f"  v_mov_b32 v6, 512")
e("  s_nop 0")
e(f"  v_cndmask_b32 v{V_Q16}, 16, 0, vcc")
e(f"  v_cndmask_b32 v{V_AI}, 0, v6, vcc")
e("  s_mul_i32 s33, s12, 816")
e(f"  s_add_u32 s33, s33, {L_S}")
e(f"  v_lshlrev_b32 v{V_SC}, 1, v1")
e(f"  v_add_u32 v{V_SC}, s33, v{V_SC}")
e(f"  v_mul_u32_u24 v{V_SR}, 48, v1")
e(f"  v_lshl_add_u32 v{V_SR}, v2, 3, v{V_SR}")
e(f"  v_add_u32 v{V_SR}, s33, v{V_SR}")
e(f"  v_mov_b32 v{V_ONE}, 0x3f80")
e(f"  v_mov_b32 v{V_MASK}, 0xffff0000")
e("  s_mov_b32 s40, 0xfffffe00")
e("  s_mov_b32 s45, 0x7e00" if 'B' in X else "  s_mov_b32 s45, 0xfffffe00")
e("  s_mov_b32 s41, 0xffff0000")
e(f"  s_waitcnt vmcnt({NW1})")
e("  v_lshl_or_b32 v5, v96, 16, v5")
e("  v_mov_b32 v3, v97")
e("  s_cmp_lg_u32 s14, 0")
e("  s_cbranch_scc1 K1_P2")
for i in range(4):
    for jl in range(4):
        src = 106 + 2 * i + jl // 2
        if jl % 2 == 0:
            e(f"  v_lshlrev_b32 v{ACC+4*jl+i}, 16, v{src}")
        else:
            e(f"  v_and_b32 v{ACC+4*jl+i}, s41, v{src}")
e("  s_branch K1_ROUND")
L("K1_P2")
for r in range(16):
    e(f"  v_mov_b32 v{ACC+r}, 0")

L("K1_ROUND")
e("  v_sub_u32 v6, v11, v4")
e(f"  v_min_u32 v7, {TK}, v6")
e("  v_lshlrev_b32 v96, 14, v0")
e("  v_lshl_add_u32 v96, v4, 2, v96")
e(f"  s_mov_b32 s33, {RR}")
for k in range(TK // 4):
    e(f"  buffer_load_dwordx4 v[{56+4*k}:{59+4*k}], v96, s[16:19], s33 offen offset:{16*k}")
e("  v_and_b32 v100, 0xffff, v5")
e("  v_lshrrev_b32 v101, 16, v5")
e("  v_mov_b32 v102, v3")
for k in range(3):
    e(f"  v_max_u32 v{100+k}, v{100+k}, v4")
    e(f"  v_sub_u32 v{100+k}, v{100+k}, v4")
    e(f"  v_min_u32 v{100+k}, v{100+k}, v7")
e("  v_sub_u32 v8, v101, v100")
e("  v_lshl_or_b32 v8, v8, 16, v100")
e("  v_sub_u32 v9, v102, v101")
e("  v_sub_u32 v10, v7, v102")
e("  v_lshl_or_b32 v9, v10, 16, v9")
e("  v_mov_b32 v103, v8")
e("  v_mov_b32 v104, v9")
wave_scan(8, 10)
wave_scan(9, 10)
e(f"  v_cmp_lt_u32 vcc, {TK}, v6")
e("  s_cmp_lg_u64 vcc, 0")
e("  s_cselect_b32 s34, 0x80000000, 0")
e("  v_or_b32 v98, s34, v8")
e("  v_mov_b32 v99, v9")
e("  s_lshl_b32 s35, s12, 3")
e("  v_mov_b32 v97, s35")
e("  v_and_b32 v13, 63, v0")
e("  v_cmp_eq_u32 vcc, 63, v13")
e("  s_and_saveexec_b64 s[30:31], vcc")
e(f"  ds_write_b64 v97, v[98:99] offset:{L_WT}")
e("  s_mov_b64 exec, s[30:31]")
e("  s_waitcnt lgkmcnt(0)")
e("  s_barrier")
e(f"  ds_read_b128 v[112:115], v{V_ZERO} offset:{L_WT}")
e(f"  ds_read_b128 v[116:119], v{V_ZERO} offset:{L_WT+16}")
e("  s_waitcnt lgkmcnt(0)")
for r in range(8):
    e(f"  v_readfirstlane_b32 s{54+r}, v{112+r}")
e("  s_nop 3")
e("  s_or_b32 s36, s54, s56")
e("  s_or_b32 s36, s36, s58")
e("  s_or_b32 s36, s36, s60")
for r in (54, 56, 58, 60):
    e(f"  s_and_b32 s{r}, s{r}, 0x7fffffff")
e("  s_add_u32 s42, s54, s56")
e("  s_add_u32 s42, s42, s58")
e("  s_add_u32 s42, s42, s60")
e("  s_add_u32 s43, s55, s57")
e("  s_add_u32 s43, s43, s59")
e("  s_add_u32 s43, s43, s61")
for w, (ra, rb) in enumerate(((54, 55), (56, 57), (58, 59))):
    e(f"  s_cmp_gt_u32 s12, {w}")
    e(f"  s_cselect_b32 s{ra}, s{ra}, 0")
    e(f"  s_cselect_b32 s{rb}, s{rb}, 0")
e("  s_add_u32 s54, s54, s56")
e("  s_add_u32 s54, s54, s58")
e("  s_add_u32 s55, s55, s57")
e("  s_add_u32 s55, s55, s59")
e("  s_and_b32 s56, s42, 0xffff")
e("  s_lshr_b32 s57, s42, 16")
e("  s_add_u32 s57, s57, s56")
e("  s_and_b32 s58, s43, 0xffff")
e("  s_add_u32 s58, s58, s57")
e("  s_lshr_b32 s37, s43, 16")
e("  s_add_u32 s37, s37, s58")
e("  v_sub_u32 v8, v8, v103")
e("  v_add_u32 v8, s54, v8")
e("  v_sub_u32 v9, v9, v104")
e("  v_add_u32 v9, s55, v9")
e("  v_and_b32 v105, 0xffff, v8")
e("  v_lshlrev_b32 v105, 2, v105")
e("  v_lshrrev_b32 v106, 16, v8")
e("  v_add_u32 v106, s56, v106")
e("  v_sub_u32 v106, v106, v100")
e("  v_lshlrev_b32 v106, 2, v106")
e("  v_and_b32 v107, 0xffff, v9")
e("  v_add_u32 v107, s57, v107")
e("  v_sub_u32 v107, v107, v101")
e("  v_lshlrev_b32 v107, 2, v107")
e("  v_lshrrev_b32 v108, 16, v9")
e("  v_add_u32 v108, s58, v108")
e("  v_sub_u32 v108, v108, v102")
e("  v_lshlrev_b32 v108, 2, v108")
e("  v_lshlrev_b32 v97, 17, v0")
e("  v_add_u32 v98, s37, v0")
e("  v_lshlrev_b32 v98, 2, v98")
e("  v_mov_b32 v13, 16")
e(f"  ds_write_b32 v98, v13 offset:{L_LIST0}")
e(f"  ds_write_b32 v98, v{V_ZERO} offset:{L_LIST1}")
e("  s_waitcnt vmcnt(0)")
for j in range(TK):
    e(f"  v_cmp_lt_u32 vcc, {j}, v7")
    e("  s_and_b64 exec, exec, vcc")
    e("  s_cbranch_execz K1_LD")
    e(f"  v_cmp_lt_u32 vcc, {j}, v102")
    e(f"  v_cmp_lt_u32 s[54:55], {j}, v101")
    e(f"  v_cmp_lt_u32 s[56:57], {j}, v100")
    e(f"  v_lshrrev_b32 v13, 9, v{56+j}")
    e("  v_cndmask_b32 v98, v108, v107, vcc")
    e("  v_and_b32 v13, s40, v13")
    e("  v_cndmask_b32 v98, v98, v106, s[54:55]")
    e(f"  v_and_or_b32 v13, v{56+j}, 31, v13")
    e("  v_cndmask_b32 v98, v98, v105, s[56:57]")
    e(f"  v_bfe_u32 v14, v{56+j}, 6, 12")
    e("  v_lshl_add_u32 v14, v14, 5, v97")
    e(f"  ds_write_b32 v98, v13 offset:{L_LIST0+4*j}")
    e(f"  ds_write_b32 v98, v14 offset:{L_LIST1+4*j}")
L("K1_LD")
e("  s_mov_b64 exec, -1")
e("  v_add_u32 v4, v4, v7")
e("  s_waitcnt lgkmcnt(0)")
e("  s_barrier")
if 'T' in X:
    e("  s_memtime s[72:73]")
e("  s_add_u32 s38, s37, 15")
e("  s_lshr_b32 s38, s38, 4")
e("  s_mov_b32 s39, s14")
e("  s_cmp_ge_u32 s39, s38")
e("  s_cbranch_scc1 K1_RDONE")
if 'A' in X: e("  s_branch K1_RDONE")
e("  s_lshl_b32 s33, s14, 6")
e(f"  v_lshlrev_b32 v{V_LO}, 2, v1")
e(f"  v_add_u32 v{V_LO}, s33, v{V_LO}")
e(f"  v_lshlrev_b32 v{V_LR}, 4, v2")
e(f"  v_add_u32 v{V_LR}, s33, v{V_LR}")
e("  s_lshl_b32 s33, s12, 12")
e(f"  s_add_u32 s33, s33, {L_EA}")
e("  s_mov_b32 s48, s33")
e(f"  v_lshlrev_b32 v{V_AB}, 5, v1")
e(f"  v_lshl_add_u32 v{V_AB}, v2, 4, v{V_AB}")
e(f"  v_add_u32 v{V_AB}, s33, v{V_AB}")
e("  v_cmp_gt_u32 vcc, 2, v2")
e("  s_nop 1")
e(f"  v_cndmask_b32 v{V_AB}, v{V_OHC}, v{V_AB}, vcc")
e(f"  v_bfe_u32 v{V_DI}, v0, 5, 1")
e(f"  v_lshlrev_b32 v{V_DI}, 7, v{V_DI}")
e("  v_bfe_u32 v6, v0, 1, 4")
e(f"  v_lshl_add_u32 v{V_DI}, v6, 2, v{V_DI}")
e("  s_lshl_b32 s33, s14, 6")
e(f"  v_add_u32 v{V_DI}, s33, v{V_DI}")
e(f"  v_and_b32 v{V_H16}, 1, v0")
e(f"  v_lshlrev_b32 v{V_H16}, 4, v{V_H16}")
e("  s_mov_b32 s50, 0")
G = [56, 72]
A = [88, 92]
SAT = 96
SF = [98, 126]
W1 = 101
W0s = [100, 10]
RWs = [102, 6]
Z = 106

def dma_rd():
    e(f"  ds_read_b32 v{W1}, v{V_DI} offset:{L_LIST1}")
    e(f"  v_add_u32 v{V_DI}, 256, v{V_DI}")
def dma_go():
    e("  s_add_u32 s51, s48, s50")
    e("  s_mov_b32 m0, s51")
    e("  s_add_u32 s50, s50, 1024")
    e("  s_and_b32 s50, s50, 4095")
    if 'C' in X: e(f"  v_and_b32 v{W1}, 0xfe0, v{W1}")
    e(f"  v_add_u32 v{W1}, v{W1}, v{V_H16}")
    e(f"  buffer_load_dwordx4 v{W1}, s[20:23], 0 offen lds")
def list_rd(p):
    e(f"  ds_read_b32 v{W0s[p]}, v{V_LO} offset:{L_LIST0}")
    e(f"  ds_read_b128 v[{RWs[p]}:{RWs[p]+3}], v{V_LR} offset:{L_LIST0}")
    e(f"  v_add_u32 v{V_LO}, 128, v{V_LO}")
    e(f"  v_add_u32 v{V_LR}, 128, v{V_LR}")
def gathers(q):
    rw = RWs[q]
    for i in range(4):
        e(f"  v_and_or_b32 v{rw+i}, v{rw+i}, s45, v{V_LOFF}")
        if 'D' not in X: e(f"  buffer_load_dwordx4 v[{G[q]+4*i}:{G[q]+4*i+3}], v{rw+i}, s[16:19], 0 offen")
def addrs(q):
    w0 = W0s[q]
    e(f"  v_and_b32 v{w0}, 31, v{w0}")
    e(f"  v_mad_u32_u24 v{SAT}, v{w0}, 48, v{V_SC}")
    e(f"  v_mad_u32_u24 v{SAT+1}, v{w0}, v{V_Q16}, v{V_AB}")
    e(f"  v_mad_u32_u24 v{SAT+1}, v{V_AI}, s52, v{SAT+1}")
    e("  s_add_u32 s52, s52, 1")
    e("  s_and_b32 s52, s52, 7")
def frags(q):
    e("  s_mov_b64 exec, 0xffff")
    e(f"  ds_write_b16 v{SAT}, v{V_ONE}")
    e("  s_mov_b64 exec, -1")
    e(f"  ds_read_b64 v[{SF[q]}:{SF[q]+1}], v{V_SR}")
    e("  s_mov_b64 exec, 0xffff")
    e(f"  ds_write_b16 v{SAT}, v{V_ZERO}")
    e("  s_mov_b64 exec, -1")
    e(f"  ds_read_b128 v[{A[q]}:{A[q]+3}], v{SAT+1}")

def compute(p):
    g = G[p]
    def unp(jl):
        for i in range(4):
            src = g + 4 * i + jl // 2
            if jl % 2 == 0:
                e(f"  v_lshlrev_b32 v{Z+4*jl+i}, 16, v{src}")
            else:
                e(f"  v_and_b32 v{Z+4*jl+i}, v{V_MASK}, v{src}")
    def zm(jl):
        z = Z + 4 * jl
        e(f"  v_mfma_f32_16x16x32_bf16 v[{z}:{z+3}], v[{A[p]}:{A[p]+3}], v[{BF+4*jl}:{BF+4*jl+3}], v[{z}:{z+3}]")
    unp(0); unp(1); zm(0); unp(2); zm(1); unp(3); zm(2)
    for i in range(2):
        e(f"  v_lshlrev_b32 v{g+4*i}, 16, v{g+4*i+2}")
    zm(3)
    for i in range(2, 4):
        e(f"  v_lshlrev_b32 v{g+4*i}, 16, v{g+4*i+2}")
    for i in range(4):
        e(f"  v_lshlrev_b32 v{g+4*i+1}, 16, v{g+4*i+3}")
    for i in range(4):
        e(f"  v_and_b32 v{g+4*i+2}, v{V_MASK}, v{g+4*i+2}")
    for i in range(4):
        e(f"  v_and_b32 v{g+4*i+3}, v{V_MASK}, v{g+4*i+3}")
    hreg = [0, 2, 1, 3]
    for r in range(16):
        e(f"  v_exp_f32 v{Z+r}, v{Z+r}")
    for r in range(16):
        e(f"  v_add_f32 v{Z+r}, 1.0, v{Z+r}")
    for r in range(16):
        e(f"  v_rcp_f32 v{Z+r}, v{Z+r}")
    for jl in range(4):
        z = Z + 4 * jl
        for i in range(4):
            e(f"  v_mul_f32 v{z+i}, v{z+i}, v{g+4*i+hreg[jl]}")
        e(f"  v_cvt_pk_bf16_f32 v{z}, v{z}, v{z+1}")
        e(f"  v_cvt_pk_bf16_f32 v{z+1}, v{z+2}, v{z+3}")
    e("  s_nop 0")
    for jl in range(4):
        z = Z + 4 * jl
        a = ACC + 4 * jl
        e(f"  v_mfma_f32_16x16x16_bf16 v[{a}:{a+3}], v[{SF[p]}:{SF[p]+1}], v[{z}:{z+1}], v[{a}:{a+3}]")

def step(p):
    q = p ^ 1
    e("  s_waitcnt lgkmcnt(0)")
    gathers(q)
    if p == 0: dma_go()
    addrs(q)
    list_rd(p)
    if p == 1: dma_rd()
    frags(q)
    e("  s_waitcnt vmcnt(5)")
    compute(p)

e("  s_mul_i32 s46, s38, 0x5556")
e("  s_lshr_b32 s46, s46, 16")
e("  s_lshl_b32 s47, s46, 1")
e("  s_mov_b32 s52, 0")
list_rd(0)
list_rd(1)
dma_rd()
e("  s_waitcnt lgkmcnt(0)")
dma_go()
dma_rd()
e("  s_waitcnt lgkmcnt(0)")
dma_go()
dma_rd()
gathers(0)
addrs(0)
e("  s_setprio 2")
e("  s_waitcnt vmcnt(5)")
frags(0)
L("K1_LOOP")
e("  s_cmp_lt_u32 s39, s46")
e("  s_cbranch_scc1 K1_PR")
e("  s_setprio 1")
e("  s_cmp_lt_u32 s39, s47")
e("  s_cbranch_scc1 K1_PR")
e("  s_setprio 0")
L("K1_PR")
if 'I' in X:
    e("  s_memtime s[84:85]")
    e("  s_waitcnt lgkmcnt(0)")
    e("  s_sub_u32 s84, s84, s70")
    e("  s_lshr_b32 s86, s39, 2")
    e("  s_mov_b32 m0, s86")
    e("  v_writelane_b32 v14, s84, m0")
step(0)
e("  s_add_u32 s39, s39, 2")
e("  s_cmp_ge_u32 s39, s38")
e("  s_cbranch_scc1 K1_RDONE")
step(1)
e("  s_add_u32 s39, s39, 2")
e("  s_cmp_lt_u32 s39, s38")
e("  s_cbranch_scc1 K1_LOOP")
L("K1_RDONE")
e("  s_setprio 3")
if 'I' in X: e("  v_mov_b32 v127, v14")
e("  s_waitcnt vmcnt(0) lgkmcnt(0)")
if 'T' in X:
    e("  s_memtime s[74:75]")
e("  s_barrier")
e("  s_waitcnt vmcnt(0)")
e("  s_cmp_lt_i32 s36, 0")
e("  s_cbranch_scc1 K1_ROUND")
e("  s_nop 7")
e(f"  v_mul_u32_u24 v6, {4*RBS}, v2")
e("  v_lshl_add_u32 v6, v1, 2, v6")
e(f"  s_mul_i32 s33, s14, {16*RBS}")
e("  s_lshl_b32 s34, s13, 8")
e("  s_add_u32 s33, s33, s34")
e("  v_add_u32 v6, s33, v6")
for jl in range(4):
    for i in range(4):
        e(f"  ds_write_b32 v6, v{ACC+4*jl+i} offset:{i*RBS+jl*64}")
e("  s_waitcnt lgkmcnt(0)")
e("  s_barrier")
e("  v_lshrrev_b32 v6, 4, v0")
e(f"  v_mul_u32_u24 v7, {RBS}, v6")
e("  v_lshl_add_u32 v7, v1, 5, v7")
e("  ds_read_b128 v[64:67], v7")
e("  ds_read_b128 v[68:71], v7 offset:16")
e(f"  ds_read_b128 v[72:75], v7 offset:{16*RBS}")
e(f"  ds_read_b128 v[76:79], v7 offset:{16*RBS+16}")
e(f"  s_mov_b32 s33, {NLOG2E}")
e("  s_waitcnt lgkmcnt(0)")
for r in range(8):
    e(f"  v_add_f32 v{64+r}, v{64+r}, v{72+r}")
for r in range(8):
    e(f"  v_mul_f32 v{72+r}, s33, v{64+r}")
for r in range(8):
    e(f"  v_exp_f32 v{72+r}, v{72+r}")
e("  s_nop 0")
for r in range(8):
    e(f"  v_add_f32 v{72+r}, 1.0, v{72+r}")
for r in range(8):
    e(f"  v_rcp_f32 v{72+r}, v{72+r}")
e("  s_nop 0")
for r in range(8):
    e(f"  v_mul_f32 v{64+r}, v{64+r}, v{72+r}")
for r in range(4):
    e(f"  v_cvt_pk_bf16_f32 v{80+r}, v{64+2*r}, v{65+2*r}")
e("  v_lshlrev_b32 v7, 8, v6")
e("  v_lshl_add_u32 v7, v1, 4, v7")
e("  s_lshl_b32 s33, s10, 8")
e("  v_cmp_gt_u32 vcc, s11, v6")
e("  s_and_saveexec_b64 s[30:31], vcc")
e("  s_cbranch_execz K1_DONE")
e("  buffer_store_dwordx4 v[80:83], v7, s[24:27], s33 offen")
if 'T' in X:
    e("  s_waitcnt vmcnt(0)")
    e("  s_memtime s[76:77]")
    e("  s_memrealtime s[82:83]")
    e("  s_waitcnt lgkmcnt(0)")
    e("  s_mov_b32 s2, s15")
    e("  s_and_b32 s3, s2, 127")
    e("  s_cmp_lg_u32 s3, 0")
    e("  s_cbranch_scc1 K1_DONE")
    e("  s_cmp_lg_u32 s12, 0")
    e("  s_cbranch_scc1 K1_DONE")
    e("  s_lshr_b32 s3, s2, 7")
    e("  s_lshl_b32 s3, s3, 5")
    e("  v_mov_b32 v1, s3")
    e("  s_sub_u32 s72, s72, s70")
    e("  s_sub_u32 s74, s74, s70")
    e("  s_sub_u32 s76, s76, s70")
    e("  s_sub_u32 s82, s82, s78")
    e("  v_mov_b32 v2, s72")
    e("  v_mov_b32 v3, s74")
    e("  v_mov_b32 v4, s76")
    e("  v_mov_b32 v5, s82")
    e("  v_mov_b32 v6, s78")
    e("  v_mov_b32 v7, s38")
    if 'I' in X:
        e("  s_mov_b64 exec, 0xff")
        e("  v_mbcnt_lo_u32_b32 v8, -1, 0")
        e("  v_lshlrev_b32 v8, 2, v8")
        e("  v_add_u32 v8, v8, v1")
        e("  global_store_dword v8, v127, s[80:81] offset:256")
    e("  s_mov_b64 exec, 1")
    e("  global_store_dwordx4 v1, v[2:5], s[80:81]")
    e("  global_store_dwordx2 v1, v[6:7], s[80:81] offset:16")
L("K1_DONE")
e("  s_endpgm")

e('.section .rodata,"a"')
for name, nv in (("mpnn_prep_kernel", 192), ("mpnn_main_kernel", 128)):
    e(".p2align 6")
    e(f".amdhsa_kernel {name}")
    e(f"  .amdhsa_next_free_vgpr {nv}")
    e("  .amdhsa_next_free_sgpr 96")
    e(f"  .amdhsa_accum_offset {nv}")
    e("  .amdhsa_group_segment_fixed_size 0")
    e("  .amdhsa_kernarg_size 80")
    e("  .amdhsa_user_sgpr_count 2")
    e("  .amdhsa_user_sgpr_kernarg_segment_ptr 1")
    e("  .amdhsa_system_sgpr_workgroup_id_x 1")
    e(".end_amdhsa_kernel")

path = sys.argv[1] if len(sys.argv) > 1 else "standalone__edge_featured_mpnn_egc__graph.s"
open(path, "w").write("\n".join(out) + "\n")
print("wrote", path, "WS_END", WS_END, "K1_LDS", K1_LDS)
```

```python
import sys, os
NW1 = int(os.environ.get('NW1', '0'))
NW2 = int(os.environ.get('NW2', '0'))
X = os.environ.get('X', '')

N = 12500
E = 400000
NPAD = 12544
CH = 4096
NW = 98
EPT = 16
TK = 20
NG0 = 196 + NW + 1
NB = 1024
OROW = 2052
T1 = 0
T2 = T1 + NPAD * 512
T3 = T2 + (NPAD + 16) * 256
RR = T3 + NPAD * 256
OO = RR + NW * CH * 4
WS_END = OO + NW * OROW * 4 + 256
M2 = 703687442
NLOG2E = 0xBFB8AA3B

out = []
def e(s=""):
    out.append(s)
def L(name):
    out.append(name + ":")

def srd(d, lo, hi, nbytes):
    e(f"  s_mov_b32 s{d}, s{lo}")
    e(f"  s_and_b32 s{d+1}, s{hi}, 0xffff")
    e(f"  s_mov_b32 s{d+2}, {nbytes}")
    e(f"  s_mov_b32 s{d+3}, 0x00020000")

def wave_scan(x, t):
    for ctrl in ("row_shr:1", "row_shr:2", "row_shr:4", "row_shr:8"):
        e(f"  v_mov_b32 v{t}, 0")
        e("  s_nop 1")
        e(f"  v_mov_b32_dpp v{t}, v{x} {ctrl} row_mask:0xf bank_mask:0xf")
        e(f"  v_add_u32 v{x}, v{x}, v{t}")
    e(f"  v_mov_b32 v{t}, 0")
    e("  s_nop 1")
    e(f"  v_mov_b32_dpp v{t}, v{x} row_bcast:15 row_mask:0xa bank_mask:0xf")
    e(f"  v_add_u32 v{x}, v{x}, v{t}")
    e(f"  v_mov_b32 v{t}, 0")
    e("  s_nop 1")
    e(f"  v_mov_b32_dpp v{t}, v{x} row_bcast:31 row_mask:0xc bank_mask:0xf")
    e(f"  v_add_u32 v{x}, v{x}, v{t}")

K0_LDS = 2 * 128 * 288
CAP = NW * TK
LIST_N = CAP + 256
L_LIST0 = 0
L_LIST1 = L_LIST0 + LIST_N * 4
L_EA = L_LIST1 + LIST_N * 4
L_OH = L_EA + 16384
L_S = L_OH + 25 * 16
L_WT = L_S + 4 * 17 * 48
K1_LDS = L_WT + 32
RBS = 528
assert 2 * 16 * RBS <= L_OH

hdr = open("standalone__edge_featured_mpnn_egc__graph.s.ref").read().split("\n")
for line in hdr:
    if line.startswith("; @launch"):
        break
    e(line)
e(f"; @launch kernel=mpnn_prep_kernel grid=({NG0},1,1) block=(256,1,1) lds={K0_LDS}")
e(f"; @launch kernel=mpnn_main_kernel grid=({NB},1,1) block=(256,1,1) lds={K1_LDS}")
e('.amdgcn_target "amdgcn-amd-amdhsa--gfx950"')
e(".text")

e(".globl mpnn_prep_kernel")
e(".p2align 8")
e(".type mpnn_prep_kernel,@function")
L("mpnn_prep_kernel")
e(f"  s_cmp_ge_u32 s2, {NG0}")
e("  s_cbranch_scc1 K0_DONE")
e("  s_load_dwordx4 s[4:7], s[0:1], 0")
e("  s_load_dwordx4 s[8:11], s[0:1], 16")
e("  s_load_dwordx4 s[12:15], s[0:1], 32")
e("  s_load_dwordx2 s[16:17], s[0:1], 48")
e("  s_load_dwordx2 s[18:19], s[0:1], 72")
if 'K' in X:
    e("  s_load_dwordx2 s[80:81], s[0:1], 64")
    e("  s_memrealtime s[70:71]")
e("  s_waitcnt lgkmcnt(0)")
srd(20, 18, 19, WS_END)
e("  s_cmp_lt_u32 s2, 196")
e("  s_cbranch_scc1 K0_GEMM")
e(f"  s_cmp_lt_u32 s2, {196+NW}")
e("  s_cbranch_scc1 K0_BIN")
srd(24, 16, 17, 272 * 256)
e("  v_lshrrev_b32 v1, 4, v0")
e("  v_and_b32 v2, 15, v0")
e("  v_lshlrev_b32 v3, 8, v1")
e("  v_lshl_add_u32 v3, v2, 1, v3")
e("  v_add_u32 v3, 65536, v3")
for j in range(8):
    e(f"  buffer_load_ushort v{8+j}, v3, s[24:27], 0 offen offset:{j*32}")
e(f"  s_mov_b32 s28, {NLOG2E}")
e("  v_lshlrev_b32 v4, 8, v1")
e("  v_lshl_add_u32 v4, v2, 3, v4")
e(f"  v_add_u32 v4, {T2 + NPAD*256}, v4")
e("  s_waitcnt vmcnt(0)")
for j in range(8):
    e(f"  v_lshlrev_b32 v{8+j}, 16, v{8+j}")
    e(f"  v_mul_f32 v{8+j}, s28, v{8+j}")
for r in range(4):
    e(f"  v_cvt_pk_bf16_f32 v{16+r}, v{8+2*r}, v{9+2*r}")
e("  buffer_store_dwordx2 v[16:17], v4, s[20:23], 0 offen")
e("  buffer_store_dwordx2 v[18:19], v4, s[20:23], 0 offen offset:128")
e("  s_endpgm")

L("K0_BIN")
e("  s_sub_u32 s3, s2, 196")
srd(24, 8, 9, E * 4)
srd(28, 10, 11, E * 4)
e("  s_lshl_b32 s32, s3, 14")
e("  v_lshlrev_b32 v1, 6, v0")
VD, VS, VB, VK, VR, VT = 4, 20, 36, 52, 68, 84
for k in range(4):
    e(f"  buffer_load_dwordx4 v[{VD+4*k}:{VD+4*k+3}], v1, s[28:31], s32 offen offset:{16*k}")
for k in range(4):
    e(f"  buffer_load_dwordx4 v[{VS+4*k}:{VS+4*k+3}], v1, s[24:27], s32 offen offset:{16*k}")
BWT = 16640
BREC = 16896
for r in range(4):
    e(f"  v_mov_b32 v{100+r}, 0")
e("  v_lshlrev_b32 v2, 4, v0")
e("  ds_write_b128 v2, v[100:103]")
e("  ds_write_b128 v2, v[100:103] offset:4096")
e("  ds_write_b128 v2, v[100:103] offset:8192")
e("  ds_write_b128 v2, v[100:103] offset:12288")
e("  ds_write_b128 v2, v[100:103] offset:16384")
e("  s_mov_b32 s42, 1374390")
e("  s_lshl_b32 s33, s3, 12")
e(f"  s_sub_u32 s33, {E}, s33")
e(f"  s_min_u32 s33, s33, {CH}")
e("  s_lshr_b32 s34, s33, 4")
e(f"  s_mov_b32 s35, {M2}")
e("  s_movk_i32 s41, 6250")
e("  v_mov_b32 v3, 1")
e("  s_waitcnt lgkmcnt(0)")
e("  s_barrier")
e("  s_waitcnt vmcnt(0)")
e("  v_cmp_gt_u32 vcc, s34, v0")
e("  s_and_saveexec_b64 s[36:37], vcc")
e("  s_cbranch_execz K0_B1")
for k in range(EPT):
    e(f"  v_lshrrev_b32 v{VB+k}, 1, v{VD+k}")
    e(f"  v_mul_hi_u32 v{VB+k}, v{VB+k}, s35")
    e(f"  v_mul_hi_u32 v{VR+k}, v{VS+k}, s42")
    e(f"  v_lshl_add_u32 v{VK+k}, v{VB+k}, 2, v{VR+k}")
    e(f"  v_lshlrev_b32 v{VK+k}, 2, v{VK+k}")
    e(f"  ds_add_rtn_u32 v{VR+k}, v{VK+k}, v3")
L("K0_B1")
e("  s_mov_b64 exec, s[36:37]")
e("  s_waitcnt lgkmcnt(0)")
e("  s_barrier")
e("  v_lshlrev_b32 v1, 6, v0")
for k in range(4):
    e(f"  ds_read_b128 v[{128+4*k}:{131+4*k}], v1 offset:{16*k}")
e("  s_waitcnt lgkmcnt(0)")
e("  v_mov_b32 v144, 0")
e("  v_mov_b32 v145, v128")
for r in range(2, 16):
    e(f"  v_add_u32 v{144+r}, v{143+r}, v{127+r}")
e("  v_add_u32 v112, v159, v143")
e("  v_mov_b32 v113, v112")
wave_scan(113, 114)
e("  v_lshrrev_b32 v115, 6, v0")
e("  v_lshlrev_b32 v114, 2, v115")
e("  v_and_b32 v116, 63, v0")
e("  v_cmp_eq_u32 vcc, 63, v116")
e("  s_and_saveexec_b64 s[38:39], vcc")
e(f"  ds_write_b32 v114, v113 offset:{BWT}")
e("  s_mov_b64 exec, s[38:39]")
e("  s_waitcnt lgkmcnt(0)")
e("  s_barrier")
e("  v_mov_b32 v116, 0")
e(f"  ds_read_b128 v[116:119], v116 offset:{BWT}")
e("  s_waitcnt lgkmcnt(0)")
e("  v_cmp_lt_u32 vcc, 0, v115")
e("  s_nop 1")
e("  v_cndmask_b32 v116, 0, v116, vcc")
e("  v_cmp_lt_u32 vcc, 1, v115")
e("  s_nop 1")
e("  v_cndmask_b32 v117, 0, v117, vcc")
e("  v_cmp_lt_u32 vcc, 2, v115")
e("  s_nop 1")
e("  v_cndmask_b32 v118, 0, v118, vcc")
e("  v_add3_u32 v116, v116, v117, v118")
e("  v_add_u32 v116, v116, v113")
e("  v_sub_u32 v117, v116, v112")
for r in range(16):
    e(f"  v_add_u32 v{144+r}, v{144+r}, v117")
for k in range(4):
    e(f"  ds_write_b128 v1, v[{144+4*k}:{147+4*k}] offset:{16*k}")
e(f"  s_mul_i32 s40, s3, {OROW*4}")
e(f"  s_add_u32 s40, s40, {OO}")
for r in range(8):
    e(f"  v_lshl_or_b32 v{128+r}, v{145+2*r}, 16, v{144+2*r}")
e("  v_lshlrev_b32 v114, 5, v0")
e("  buffer_store_dwordx4 v[128:131], v114, s[20:23], s40 offen")
e("  buffer_store_dwordx4 v[132:135], v114, s[20:23], s40 offen offset:16")
e("  v_cmp_eq_u32 vcc, 255, v0")
e("  s_and_saveexec_b64 s[38:39], vcc")
e("  s_cbranch_execz K0_B2")
e("  buffer_store_dword v116, v114, s[20:23], s40 offen offset:32")
L("K0_B2")
e("  s_mov_b64 exec, s[38:39]")
e("  s_waitcnt lgkmcnt(0)")
e("  s_barrier")
e("  s_mov_b64 exec, s[36:37]")
e("  v_cmp_gt_u32 vcc, s34, v0")
e("  s_and_saveexec_b64 s[36:37], vcc")
e("  s_cbranch_execz K0_B3")
for k in range(EPT):
    e(f"  ds_read_b32 v{VT+k}, v{VK+k}")
e("  v_lshlrev_b32 v1, 4, v0")
for k in range(EPT):
    e(f"  v_mul_u32_u24 v{VB+k}, s41, v{VB+k}")
    e(f"  v_add_u32 v{VB+k}, 1023, v{VB+k}")
    e(f"  v_lshrrev_b32 v{VB+k}, 10, v{VB+k}")
    e(f"  v_lshlrev_b32 v{VB+k}, 1, v{VB+k}")
    e(f"  v_sub_u32 v{VB+k}, v{VD+k}, v{VB+k}")
    e(f"  v_lshl_or_b32 v{VB+k}, v{VS+k}, 18, v{VB+k}")
    e(f"  v_add_u32 v{VD+k}, {k}, v1")
    e(f"  v_lshl_or_b32 v{VB+k}, v{VD+k}, 6, v{VB+k}")
e("  s_waitcnt lgkmcnt(0)")
for k in range(EPT):
    e(f"  v_add_lshl_u32 v{VT+k}, v{VT+k}, v{VR+k}, 2")
    e(f"  ds_write_b32 v{VT+k}, v{VB+k} offset:{BREC}")
L("K0_B3")
e("  s_mov_b64 exec, s[36:37]")
e("  s_waitcnt lgkmcnt(0)")
e("  s_barrier")
e("  v_lshlrev_b32 v1, 4, v0")
for k in range(4):
    e(f"  ds_read_b128 v[{4+4*k}:{7+4*k}], v1 offset:{BREC+4096*k}")
e(f"  s_add_u32 s32, s32, {RR}")
e("  s_waitcnt lgkmcnt(0)")
for k in range(4):
    e(f"  buffer_store_dwordx4 v[{4+4*k}:{7+4*k}], v1, s[20:23], s32 offen")
    e("  s_add_u32 s32, s32, 4096")
if 'K' in X:
    e("  s_waitcnt vmcnt(0)")
    e("  s_memrealtime s[72:73]")
    e("  s_waitcnt lgkmcnt(0)")
    e("  s_and_b32 s74, s2, 31")
    e("  s_cmp_lg_u32 s74, 0")
    e("  s_cbranch_scc1 K0_DONE")
    e("  s_lshr_b32 s74, s2, 5")
    e("  s_lshl_b32 s74, s74, 3")
    e("  v_mov_b32 v1, s74")
    e("  v_mov_b32 v2, s70")
    e("  v_mov_b32 v3, s72")
    e("  v_cmp_eq_u32 vcc, 0, v0")
    e("  s_and_saveexec_b64 s[76:77], vcc")
    e("  s_cbranch_execz K0_DONE")
    e("  global_store_dwordx2 v1, v[2:3], s[80:81]")
e("  s_endpgm")

L("K0_GEMM")
e("  s_and_b32 s3, s2, 1")
e("  s_lshr_b32 s33, s2, 1")
e("  s_lshl_b32 s34, s3, 15")
e("  s_add_u32 s16, s16, s34")
e("  s_addc_u32 s17, s17, 0")
srd(24, 16, 17, 32768)
e("  s_cmp_eq_u32 s3, 0")
e("  s_cselect_b32 s34, s12, s14")
e("  s_cselect_b32 s35, s13, s15")
srd(28, 34, 35, 32768)
srd(36, 4, 5, N * 256)
e("  v_lshlrev_b32 v1, 4, v0")
for it in range(8):
    e(f"  s_mov_b32 s40, {it*4096}")
    e(f"  buffer_load_dwordx4 v[{64+4*it}:{67+4*it}], v1, s[24:27], s40 offen")
for it in range(8):
    e(f"  s_mov_b32 s40, {it*4096}")
    e(f"  buffer_load_dwordx4 v[{96+4*it}:{99+4*it}], v1, s[28:31], s40 offen")
e("  v_and_b32 v2, 15, v0")
e("  v_bfe_u32 v3, v0, 4, 2")
e("  v_lshrrev_b32 v4, 6, v0")
e("  s_lshl_b32 s41, s33, 7")
e("  v_lshlrev_b32 v5, 5, v4")
e("  v_add3_u32 v5, v5, v2, s41")
e("  v_lshlrev_b32 v6, 8, v5")
e("  v_lshl_add_u32 v6, v3, 4, v6")
e("  v_add_u32 v7, 4096, v6")
for tau in range(2):
    for s in range(4):
        r = 32 + 16 * tau + 4 * s
        e(f"  buffer_load_dwordx4 v[{r}:{r+3}], v{6+tau}, s[36:39], 0 offen offset:{s*64}")
e("  v_lshrrev_b32 v8, 4, v0")
e("  v_mul_u32_u24 v8, 288, v8")
e("  v_lshl_add_u32 v8, v2, 4, v8")
e("  v_add_u32 v9, 36864, v8")
e("  s_waitcnt vmcnt(16)")
for it in range(8):
    e(f"  ds_write_b128 v8, v[{64+4*it}:{67+4*it}] offset:{it*4608}")
e("  s_waitcnt vmcnt(8)")
for it in range(8):
    e(f"  ds_write_b128 v9, v[{96+4*it}:{99+4*it}] offset:{it*4608}")
e("  v_lshrrev_b32 v10, 2, v2")
e("  v_lshl_add_u32 v10, v3, 3, v10")
e("  v_mul_u32_u24 v10, 288, v10")
e("  v_and_b32 v11, 3, v2")
e("  v_lshl_add_u32 v10, v11, 3, v10")
e("  v_add_u32 v11, 36864, v10")
e(f"  s_mov_b32 s42, {NLOG2E}")
e("  v_lshlrev_b32 v12, 5, v4")
e("  v_lshl_add_u32 v12, v3, 2, v12")
e("  v_add_u32 v12, s41, v12")
e("  s_waitcnt lgkmcnt(0)")
e("  s_barrier")
FR = 64
AC = 128
ST = 160
FIRST_TR = len(out)
e("  s_waitcnt vmcnt(0)")
e("  s_cmp_eq_u32 s3, 1")
e("  s_cbranch_scc1 K0_GEMM1")
def gemm_tr(mat, hh):
    base = 10 + mat
    for jl in range(4):
        j = 4 * hh + jl
        for s_ in range(4):
            r = FR + 16 * jl + 4 * s_
            off = s_ * 32 * 288 + j * 32
            e(f"  ds_read_b64_tr_b16 v[{r}:{r+1}], v{base} offset:{off}")
            e(f"  ds_read_b64_tr_b16 v[{r+2}:{r+3}], v{base} offset:{off+4*288}")
def gemm_mm(nxt):
    e("  s_waitcnt lgkmcnt(0)")
    for s_ in range(4):
        for tau in range(2):
            for jl in range(4):
                a = AC + 16 * tau + 4 * jl
                xr = 32 + 16 * tau + 4 * s_
                fr = FR + 16 * jl + 4 * s_
                c = "0" if s_ == 0 else f"v[{a}:{a+3}]"
                e(f"  v_mfma_f32_16x16x32_bf16 v[{a}:{a+3}], v[{xr}:{xr+3}], v[{fr}:{fr+3}], {c}")
    e("  s_nop 7")
    e("  s_nop 1")
    if nxt is not None:
        gemm_tr(*nxt)
def gemm_mat(mat, hh):
    nxt = (1, hh) if mat == 0 else ((0, 1) if hh == 0 else None)
    gemm_mm(nxt)

def scale_acc():
    for r in range(32):
        e(f"  v_mul_f32 v{AC+r}, s42, v{AC+r}")

_save = out[FIRST_TR:]
del out[FIRST_TR:]
gemm_tr(0, 0)
out.extend(_save)
e("  v_lshlrev_b32 v14, 8, v12")
e("  v_lshl_add_u32 v14, v2, 3, v14")
e("  v_add_u32 v15, 4096, v14")
e(f"  s_mov_b32 s44, {T2}")
e(f"  s_mov_b32 s45, {T3}")
for hh in range(2):
    for mat in range(2):
        gemm_mat(mat, hh)
        if mat == 0: scale_acc()
        for tau in range(2):
            for i in range(4):
                a = AC + 16 * tau + i
                st = ST + 16 * mat + 8 * tau + 2 * i
                e(f"  v_cvt_pk_bf16_f32 v{st}, v{a}, v{a+4}")
                e(f"  v_cvt_pk_bf16_f32 v{st+1}, v{a+8}, v{a+12}")
        for tau in range(2):
            for i in range(4):
                st = ST + 16 * mat + 8 * tau + 2 * i
                e(f"  buffer_store_dwordx2 v[{st}:{st+1}], v{14+tau}, s[20:23], s{44+mat} offen offset:{i*256+hh*128}")
e("  s_endpgm")

L("K0_GEMM1")
e("  s_mov_b32 s45, 0xffff0000")
e("  s_mov_b32 s46, 0x80000000")
e("  v_lshlrev_b32 v14, 9, v12")
e("  v_lshl_add_u32 v14, v2, 4, v14")
e("  v_add_u32 v15, 8192, v14")
for hh in range(2):
    gemm_mat(0, hh)
    scale_acc()
    for tau in range(2):
        for i in range(4):
            a = AC + 16 * tau + i
            st = ST + 16 * tau + 4 * i
            e(f"  v_cvt_pk_bf16_f32 v{st}, v{a}, v{a+4}")
            e(f"  v_cvt_pk_bf16_f32 v{st+1}, v{a+8}, v{a+12}")
    gemm_mat(1, hh)
    for tau in range(2):
        for i in range(4):
            a = AC + 16 * tau + i
            st = ST + 16 * tau + 4 * i
            for d, (ev, od) in enumerate(((a, a + 4), (a + 8, a + 12))):
                e(f"  v_cvt_pk_bf16_f32 v16, v{ev}, v{ev}")
                e("  v_and_b32 v16, 0xffff, v16")
                e(f"  v_and_b32 v17, 0x7fffffff, v{od}")
                e("  v_add_u32 v17, 0x8000, v17")
                e("  v_max_u32 v17, v17, v16")
                e("  v_sub_u32 v17, v17, v16")
                e("  v_and_or_b32 v17, v17, s45, v16")
                e(f"  v_bfi_b32 v{st+2+d}, s46, v{od}, v17")
    for tau in range(2):
        for i in range(4):
            st = ST + 16 * tau + 4 * i
            e(f"  buffer_store_dwordx4 v[{st}:{st+3}], v{14+tau}, s[20:23], 0 offen offset:{i*512+hh*256}")
    e("  s_nop 1")
L("K0_DONE")
e("  s_endpgm")

e(".globl mpnn_main_kernel")
e(".p2align 8")
e(".type mpnn_main_kernel,@function")
L("mpnn_main_kernel")
e(f"  s_cmp_ge_u32 s2, {NB}")
e("  s_cbranch_scc1 K1_DONE")
e("  s_setprio 3")
e("  s_mov_b32 s15, s2")
e("  s_and_b32 s3, s2, 7")
e("  s_lshl_b32 s3, s3, 7")
e("  s_lshr_b32 s2, s2, 3")
e("  s_add_u32 s2, s2, s3")
e("  s_load_dwordx2 s[4:5], s[0:1], 8")
e("  s_load_dwordx2 s[6:7], s[0:1], 56")
e("  s_load_dwordx2 s[8:9], s[0:1], 72")
if 'T' in X:
    e("  s_load_dwordx2 s[80:81], s[0:1], 64")
    e("  s_memtime s[70:71]")
    e("  s_memrealtime s[78:79]")
e("  s_mul_i32 s3, s2, 6250")
e("  s_add_u32 s10, s3, 1023")
e("  s_lshr_b32 s10, s10, 10")
e("  s_add_u32 s11, s3, 7273")
e("  s_lshr_b32 s11, s11, 10")
e("  s_sub_u32 s11, s11, s10")
e("  s_lshl_b32 s11, s11, 1")
e("  s_lshl_b32 s10, s10, 1")
V_N, V_Q, V_T = 1, 2, 3
e("  v_and_b32 v1, 15, v0")
e("  v_bfe_u32 v2, v0, 4, 2")
e("  v_readfirstlane_b32 s12, v0")
e("  s_nop 3")
e("  s_lshr_b32 s12, s12, 6")
e("  s_and_b32 s13, s12, 1")
e("  s_lshr_b32 s14, s12, 1")
e("  s_waitcnt lgkmcnt(0)")
srd(16, 8, 9, WS_END)
srd(20, 4, 5, E * 32)
srd(24, 6, 7, N * 256)
e(f"  v_mul_u32_u24 v3, {OROW*4}, v0")
e("  s_lshl_b32 s28, s2, 3")
e(f"  s_add_u32 s28, s28, {OO}")
e("  v_mov_b32 v96, 0")
e("  v_mov_b32 v97, 0")
e("  v_mov_b32 v98, 0")
e(f"  v_cmp_gt_u32 vcc, {NW}, v0")
e("  s_and_saveexec_b64 s[30:31], vcc")
e("  s_cbranch_execz K1_P0")
e("  buffer_load_dwordx3 v[96:98], v3, s[16:19], s28 offen")
L("K1_P0")
e("  s_mov_b64 exec, s[30:31]")
if 'P' in X:
    e("  s_mul_i32 s33, s2, 12544")
    e("  v_lshlrev_b32 v6, 4, v0")
    for i in range(3):
        e(f"  buffer_load_dwordx4 v[{56+4*i}:{59+4*i}], v6, s[20:23], s33 offen")
        e("  s_add_u32 s33, s33, 4096")
    e("  v_cmp_gt_u32 vcc, 16, v0")
    e("  s_and_saveexec_b64 s[30:31], vcc")
    e("  s_cbranch_execz K1_P0B")
    e("  buffer_load_dwordx4 v[68:71], v6, s[20:23], s33 offen")
    L("K1_P0B")
    e("  s_mov_b64 exec, s[30:31]")
BF = 16
ACC = 32
e("  v_lshlrev_b32 v7, 11, v2")
e("  v_lshl_add_u32 v7, v1, 3, v7")
e("  s_lshl_b32 s33, s10, 8")
e("  s_sub_u32 s33, s33, 4096")
e("  v_mov_b32 v8, s33")
e(f"  v_mov_b32 v9, {NPAD*256}")
e("  v_cmp_gt_u32 vcc, 2, v2")
e("  s_lshl_b32 s34, s13, 7")
e(f"  s_add_u32 s34, s34, {T2}")
e("  v_cndmask_b32 v8, v8, v9, vcc")
e("  v_add_u32 v7, v7, v8")
for jj in range(8):
    e(f"  buffer_load_dwordx2 v[{72+2*jj}:{73+2*jj}], v7, s[16:19], s34 offen offset:{jj*256}")
e("  s_cmp_lg_u32 s14, 0")
e("  s_cbranch_scc1 K1_P1")
e("  v_lshlrev_b32 v6, 10, v2")
e("  v_lshl_add_u32 v6, v1, 3, v6")
e("  s_lshl_b32 s33, s10, 8")
e("  s_lshl_b32 s34, s13, 7")
e("  s_add_u32 s33, s33, s34")
e(f"  s_add_u32 s33, s33, {T3}")
for i in range(4):
    e(f"  buffer_load_dwordx2 v[{106+2*i}:{107+2*i}], v6, s[16:19], s33 offen offset:{i*256}")
L("K1_P1")
e("  s_lshr_b32 s53, s15, 3")
e(f"  s_mul_i32 s53, s53, {(NW1+NW2)*4096}")
e("  v_lshlrev_b32 v121, 4, v0")
for i in range(NW1):
    e("  buffer_load_dwordx4 v[72:75], v121, s[16:19], s53 offen")
    e("  s_add_u32 s53, s53, 4096")
e("  v_lshrrev_b32 v6, 2, v0")
e("  v_and_b32 v7, 3, v0")
e("  v_lshlrev_b32 v7, 1, v7")
e("  v_add_u32 v7, 8, v7")
e("  v_mov_b32 v9, 0x3f80")
e("  v_mov_b32 v10, 0x3f800000")
e("  v_cmp_eq_u32 vcc, v6, v7")
e("  s_nop 1")
e("  v_cndmask_b32 v8, 0, v9, vcc")
e("  v_add_u32 v7, 1, v7")
e("  v_cmp_eq_u32 vcc, v6, v7")
e("  s_nop 1")
e("  v_cndmask_b32 v8, v8, v10, vcc")
e("  v_lshlrev_b32 v6, 2, v0")
e("  v_cmp_gt_u32 vcc, 100, v0")
e("  s_and_saveexec_b64 s[30:31], vcc")
e(f"  ds_write_b32 v6, v8 offset:{L_OH}")
e("  s_mov_b64 exec, s[30:31]")
for r in range(4):
    e(f"  v_mov_b32 v{12+r}, 0")
e("  v_lshlrev_b32 v6, 4, v0")
e("  v_cmp_gt_u32 vcc, 204, v0")
e("  s_and_saveexec_b64 s[30:31], vcc")
e(f"  ds_write_b128 v6, v[12:15] offset:{L_S}")
e("  s_mov_b64 exec, s[30:31]")
V_LOFF = 48
V_Q16 = 49
V_OHC = 50
V_SC = 51
V_SR = 52
V_LO = 53
V_LR = 54
V_ONE = 55
V_ZERO = 12
V_MASK = 15
V_AB = 122
V_AI = 123
V_DI = 124
V_H16 = 125
W0, W1 = 100, 101
e("  s_lshl_b32 s33, s13, 8")
e(f"  v_lshlrev_b32 v{V_LOFF}, 4, v1")
if 'H' not in X: e(f"  v_add_u32 v{V_LOFF}, s33, v{V_LOFF}")
e(f"  v_lshlrev_b32 v{V_OHC}, 7, v2")
e(f"  v_sub_u32 v{V_OHC}, {L_OH+384}, v{V_OHC}")
e("  v_cmp_gt_u32 vcc, 2, v2")
e(f"  v_mov_b32 v6, 512")
e("  s_nop 0")
e(f"  v_cndmask_b32 v{V_Q16}, 16, 0, vcc")
e(f"  v_cndmask_b32 v{V_AI}, 0, v6, vcc")
e("  s_mul_i32 s33, s12, 816")
e(f"  s_add_u32 s33, s33, {L_S}")
e(f"  v_lshlrev_b32 v{V_SC}, 1, v1")
e(f"  v_add_u32 v{V_SC}, s33, v{V_SC}")
e(f"  v_mul_u32_u24 v{V_SR}, 48, v1")
e(f"  v_lshl_add_u32 v{V_SR}, v2, 3, v{V_SR}")
e(f"  v_add_u32 v{V_SR}, s33, v{V_SR}")
e(f"  v_mov_b32 v{V_ONE}, 0x3f80")
e(f"  v_mov_b32 v{V_MASK}, 0xffff0000")
e("  s_mov_b32 s40, 0xfffffe00")
e("  s_mov_b32 s45, 0x7e00" if 'B' in X else "  s_mov_b32 s45, 0xfffffe00")
e("  s_mov_b32 s41, 0xffff0000")
e(f"  s_waitcnt vmcnt({NW1})")
e("  v_and_b32 v4, 0xffff, v96")
e("  v_lshrrev_b32 v5, 16, v96")
e("  v_lshl_or_b32 v5, v97, 16, v5")
e("  v_lshrrev_b32 v3, 16, v97")
e("  v_and_b32 v11, 0xffff, v98")
e("  s_mov_b32 s33, 0x05040100")
e("  s_mov_b32 s34, 0x07060302")
for jl in range(4):
    for r in range(4):
        e(f"  v_perm_b32 v{BF+4*jl+r}, v{72+4*r+2+jl//2}, v{72+4*r+jl//2}, s{33+jl%2}")
e("  s_cmp_lg_u32 s14, 0")
e("  s_cbranch_scc1 K1_P2")
for i in range(4):
    for jl in range(4):
        src = 106 + 2 * i + jl // 2
        if jl % 2 == 0:
            e(f"  v_lshlrev_b32 v{ACC+4*jl+i}, 16, v{src}")
        else:
            e(f"  v_and_b32 v{ACC+4*jl+i}, s41, v{src}")
e("  s_branch K1_ROUND")
L("K1_P2")
for r in range(16):
    e(f"  v_mov_b32 v{ACC+r}, 0")

L("K1_ROUND")
e("  v_sub_u32 v6, v11, v4")
e(f"  v_min_u32 v7, {TK}, v6")
e("  v_lshlrev_b32 v96, 14, v0")
e("  v_lshl_add_u32 v96, v4, 2, v96")
e(f"  s_mov_b32 s33, {RR}")
for k in range(3):
    e(f"  buffer_load_dwordx4 v[{56+4*k}:{59+4*k}], v96, s[16:19], s33 offen offset:{16*k}")
e("  v_cmp_lt_u32 vcc, 12, v7")
e("  s_and_saveexec_b64 s[30:31], vcc")
e("  s_cbranch_execz K1_R1")
for k in range(3, TK // 4):
    e(f"  buffer_load_dwordx4 v[{56+4*k}:{59+4*k}], v96, s[16:19], s33 offen offset:{16*k}")
L("K1_R1")
e("  s_mov_b64 exec, s[30:31]")
e("  v_and_b32 v100, 0xffff, v5")
e("  v_lshrrev_b32 v101, 16, v5")
e("  v_mov_b32 v102, v3")
for k in range(3):
    e(f"  v_max_u32 v{100+k}, v{100+k}, v4")
    e(f"  v_sub_u32 v{100+k}, v{100+k}, v4")
    e(f"  v_min_u32 v{100+k}, v{100+k}, v7")
e("  v_sub_u32 v8, v101, v100")
e("  v_lshl_or_b32 v8, v8, 16, v100")
e("  v_sub_u32 v9, v102, v101")
e("  v_sub_u32 v10, v7, v102")
e("  v_lshl_or_b32 v9, v10, 16, v9")
e("  v_mov_b32 v103, v8")
e("  v_mov_b32 v104, v9")
wave_scan(8, 10)
wave_scan(9, 10)
e(f"  v_cmp_lt_u32 vcc, {TK}, v6")
e("  s_cmp_lg_u64 vcc, 0")
e("  s_cselect_b32 s34, 0x80000000, 0")
e("  v_or_b32 v98, s34, v8")
e("  v_mov_b32 v99, v9")
e("  s_lshl_b32 s35, s12, 3")
e("  v_mov_b32 v97, s35")
e("  v_and_b32 v13, 63, v0")
e("  v_cmp_eq_u32 vcc, 63, v13")
e("  s_and_saveexec_b64 s[30:31], vcc")
e(f"  ds_write_b64 v97, v[98:99] offset:{L_WT}")
e("  s_mov_b64 exec, s[30:31]")
e("  s_waitcnt lgkmcnt(0)")
e("  s_barrier")
e(f"  ds_read_b128 v[112:115], v{V_ZERO} offset:{L_WT}")
e(f"  ds_read_b128 v[116:119], v{V_ZERO} offset:{L_WT+16}")
e("  s_waitcnt lgkmcnt(0)")
for r in range(8):
    e(f"  v_readfirstlane_b32 s{54+r}, v{112+r}")
e("  s_nop 3")
e("  s_or_b32 s36, s54, s56")
e("  s_or_b32 s36, s36, s58")
e("  s_or_b32 s36, s36, s60")
for r in (54, 56, 58, 60):
    e(f"  s_and_b32 s{r}, s{r}, 0x7fffffff")
e("  s_add_u32 s42, s54, s56")
e("  s_add_u32 s42, s42, s58")
e("  s_add_u32 s42, s42, s60")
e("  s_add_u32 s43, s55, s57")
e("  s_add_u32 s43, s43, s59")
e("  s_add_u32 s43, s43, s61")
for w, (ra, rb) in enumerate(((54, 55), (56, 57), (58, 59))):
    e(f"  s_cmp_gt_u32 s12, {w}")
    e(f"  s_cselect_b32 s{ra}, s{ra}, 0")
    e(f"  s_cselect_b32 s{rb}, s{rb}, 0")
e("  s_add_u32 s54, s54, s56")
e("  s_add_u32 s54, s54, s58")
e("  s_add_u32 s55, s55, s57")
e("  s_add_u32 s55, s55, s59")
e("  s_and_b32 s56, s42, 0xffff")
e("  s_lshr_b32 s57, s42, 16")
e("  s_add_u32 s57, s57, s56")
e("  s_and_b32 s58, s43, 0xffff")
e("  s_add_u32 s58, s58, s57")
e("  s_lshr_b32 s37, s43, 16")
e("  s_add_u32 s37, s37, s58")
e("  v_sub_u32 v8, v8, v103")
e("  v_add_u32 v8, s54, v8")
e("  v_sub_u32 v9, v9, v104")
e("  v_add_u32 v9, s55, v9")
e("  v_and_b32 v105, 0xffff, v8")
e("  v_lshlrev_b32 v105, 2, v105")
e("  v_lshrrev_b32 v106, 16, v8")
e("  v_add_u32 v106, s56, v106")
e("  v_sub_u32 v106, v106, v100")
e("  v_lshlrev_b32 v106, 2, v106")
e("  v_and_b32 v107, 0xffff, v9")
e("  v_add_u32 v107, s57, v107")
e("  v_sub_u32 v107, v107, v101")
e("  v_lshlrev_b32 v107, 2, v107")
e("  v_lshrrev_b32 v108, 16, v9")
e("  v_add_u32 v108, s58, v108")
e("  v_sub_u32 v108, v108, v102")
e("  v_lshlrev_b32 v108, 2, v108")
e("  v_lshlrev_b32 v97, 17, v0")
e("  v_add_u32 v98, s37, v0")
e("  v_lshlrev_b32 v98, 2, v98")
e("  v_mov_b32 v13, 16")
e(f"  ds_write_b32 v98, v13 offset:{L_LIST0}")
e(f"  ds_write_b32 v98, v{V_ZERO} offset:{L_LIST1}")
e("  s_waitcnt vmcnt(0)")
for j in range(TK):
    e(f"  v_cmp_lt_u32 vcc, {j}, v7")
    e("  s_and_b64 exec, exec, vcc")
    e("  s_cbranch_execz K1_LD")
    e(f"  v_cmp_lt_u32 vcc, {j}, v102")
    e(f"  v_cmp_lt_u32 s[54:55], {j}, v101")
    e(f"  v_cmp_lt_u32 s[56:57], {j}, v100")
    e(f"  v_lshrrev_b32 v13, 9, v{56+j}")
    e("  v_cndmask_b32 v98, v108, v107, vcc")
    e("  v_and_b32 v13, s40, v13")
    e("  v_cndmask_b32 v98, v98, v106, s[54:55]")
    e(f"  v_and_or_b32 v13, v{56+j}, 31, v13")
    e("  v_cndmask_b32 v98, v98, v105, s[56:57]")
    e(f"  v_bfe_u32 v14, v{56+j}, 6, 12")
    e("  v_lshl_add_u32 v14, v14, 5, v97")
    e(f"  ds_write_b32 v98, v13 offset:{L_LIST0+4*j}")
    e(f"  ds_write_b32 v98, v14 offset:{L_LIST1+4*j}")
L("K1_LD")
e("  s_mov_b64 exec, -1")
e("  v_add_u32 v4, v4, v7")
e("  s_waitcnt lgkmcnt(0)")
e("  s_barrier")
if 'T' in X:
    e("  s_memtime s[72:73]")
e("  s_add_u32 s38, s37, 15")
e("  s_lshr_b32 s38, s38, 4")
e("  s_mov_b32 s39, s14")
e("  s_cmp_ge_u32 s39, s38")
e("  s_cbranch_scc1 K1_RDONE")
if 'A' in X: e("  s_branch K1_RDONE")
e("  s_lshl_b32 s33, s14, 6")
e(f"  v_lshlrev_b32 v{V_LO}, 2, v1")
e(f"  v_add_u32 v{V_LO}, s33, v{V_LO}")
e(f"  v_lshlrev_b32 v{V_LR}, 4, v2")
e(f"  v_add_u32 v{V_LR}, s33, v{V_LR}")
e("  s_lshl_b32 s33, s12, 12")
e(f"  s_add_u32 s33, s33, {L_EA}")
e("  s_mov_b32 s48, s33")
e(f"  v_lshlrev_b32 v{V_AB}, 5, v1")
e(f"  v_lshl_add_u32 v{V_AB}, v2, 4, v{V_AB}")
e(f"  v_add_u32 v{V_AB}, s33, v{V_AB}")
e("  v_cmp_gt_u32 vcc, 2, v2")
e("  s_nop 1")
e(f"  v_cndmask_b32 v{V_AB}, v{V_OHC}, v{V_AB}, vcc")
e(f"  v_bfe_u32 v{V_DI}, v0, 5, 1")
e(f"  v_lshlrev_b32 v{V_DI}, 7, v{V_DI}")
e("  v_bfe_u32 v6, v0, 1, 4")
e(f"  v_lshl_add_u32 v{V_DI}, v6, 2, v{V_DI}")
e("  s_lshl_b32 s33, s14, 6")
e(f"  v_add_u32 v{V_DI}, s33, v{V_DI}")
e(f"  v_and_b32 v{V_H16}, 1, v0")
e(f"  v_lshlrev_b32 v{V_H16}, 4, v{V_H16}")
e("  s_mov_b32 s50, 0")
G = [56, 72]
A = [88, 92]
SAT = 96
SF = [98, 126]
W1 = 101
W0s = [100, 10]
RWs = [102, 6]
Z = 106

def dma_rd():
    e(f"  ds_read_b32 v{W1}, v{V_DI} offset:{L_LIST1}")
    e(f"  v_add_u32 v{V_DI}, 256, v{V_DI}")
def dma_go():
    e("  s_add_u32 s51, s48, s50")
    e("  s_mov_b32 m0, s51")
    e("  s_add_u32 s50, s50, 1024")
    e("  s_and_b32 s50, s50, 4095")
    if 'C' in X: e(f"  v_and_b32 v{W1}, 0xfe0, v{W1}")
    e(f"  v_add_u32 v{W1}, v{W1}, v{V_H16}")
    e(f"  buffer_load_dwordx4 v{W1}, s[20:23], 0 offen" + os.environ.get('EAF', '') + " lds")
def list_rd(p):
    e(f"  ds_read_b32 v{W0s[p]}, v{V_LO} offset:{L_LIST0}")
    e(f"  ds_read_b128 v[{RWs[p]}:{RWs[p]+3}], v{V_LR} offset:{L_LIST0}")
    e(f"  v_add_u32 v{V_LO}, 128, v{V_LO}")
    e(f"  v_add_u32 v{V_LR}, 128, v{V_LR}")
def gathers(q):
    rw = RWs[q]
    for i in range(4):
        e(f"  v_and_or_b32 v{rw+i}, v{rw+i}, s45, v{V_LOFF}")
        if 'D' not in X: e(f"  buffer_load_dwordx4 v[{G[q]+4*i}:{G[q]+4*i+3}], v{rw+i}, s[16:19], 0 offen")
def addrs(q):
    w0 = W0s[q]
    e(f"  v_and_b32 v{w0}, 31, v{w0}")
    e(f"  v_mad_u32_u24 v{SAT}, v{w0}, 48, v{V_SC}")
    e(f"  v_mad_u32_u24 v{SAT+1}, v{w0}, v{V_Q16}, v{V_AB}")
    e(f"  v_mad_u32_u24 v{SAT+1}, v{V_AI}, s52, v{SAT+1}")
    e("  s_add_u32 s52, s52, 1")
    e("  s_and_b32 s52, s52, 7")
def frags(q):
    e("  s_mov_b64 exec, 0xffff")
    e(f"  ds_write_b16 v{SAT}, v{V_ONE}")
    e("  s_mov_b64 exec, -1")
    e(f"  ds_read_b64 v[{SF[q]}:{SF[q]+1}], v{V_SR}")
    e("  s_mov_b64 exec, 0xffff")
    e(f"  ds_write_b16 v{SAT}, v{V_ZERO}")
    e("  s_mov_b64 exec, -1")
    e(f"  ds_read_b128 v[{A[q]}:{A[q]+3}], v{SAT+1}")

def compute(p):
    g = G[p]
    def unp(jl):
        for i in range(4):
            src = g + 4 * i + jl // 2
            if jl % 2 == 0:
                e(f"  v_lshlrev_b32 v{Z+4*jl+i}, 16, v{src}")
            else:
                e(f"  v_and_b32 v{Z+4*jl+i}, v{V_MASK}, v{src}")
    def zm(jl):
        z = Z + 4 * jl
        e(f"  v_mfma_f32_16x16x32_bf16 v[{z}:{z+3}], v[{A[p]}:{A[p]+3}], v[{BF+4*jl}:{BF+4*jl+3}], v[{z}:{z+3}]")
    unp(0); unp(1); zm(0); unp(2); zm(1); unp(3); zm(2)
    for i in range(2):
        e(f"  v_lshlrev_b32 v{g+4*i}, 16, v{g+4*i+2}")
    zm(3)
    for i in range(2, 4):
        e(f"  v_lshlrev_b32 v{g+4*i}, 16, v{g+4*i+2}")
    for i in range(4):
        e(f"  v_lshlrev_b32 v{g+4*i+1}, 16, v{g+4*i+3}")
    hreg = [0, 2, 1, 3]
    for r in range(16):
        e(f"  v_exp_f32 v{Z+r}, v{Z+r}")
    for r in range(16):
        e(f"  v_add_f32 v{Z+r}, 1.0, v{Z+r}")
    for r in range(16):
        e(f"  v_rcp_f32 v{Z+r}, v{Z+r}")
    for jl in range(4):
        z = Z + 4 * jl
        for i in range(4):
            e(f"  v_mul_f32 v{z+i}, v{z+i}, v{g+4*i+hreg[jl]}")
        e(f"  v_cvt_pk_bf16_f32 v{z}, v{z}, v{z+1}")
        e(f"  v_cvt_pk_bf16_f32 v{z+1}, v{z+2}, v{z+3}")
    e("  s_nop 0")
    for jl in range(4):
        z = Z + 4 * jl
        a = ACC + 4 * jl
        e(f"  v_mfma_f32_16x16x16_bf16 v[{a}:{a+3}], v[{SF[p]}:{SF[p]+1}], v[{z}:{z+1}], v[{a}:{a+3}]")

def step(p):
    q = p ^ 1
    e("  s_waitcnt lgkmcnt(0)")
    gathers(q)
    if p == 0: dma_go()
    addrs(q)
    list_rd(p)
    if p == 1: dma_rd()
    frags(q)
    e("  s_waitcnt vmcnt(5)")
    compute(p)

e("  s_mul_i32 s46, s38, 0x5556")
e("  s_lshr_b32 s46, s46, 16")
e("  s_lshl_b32 s47, s46, 1")
e("  s_mov_b32 s52, 0")
list_rd(0)
list_rd(1)
dma_rd()
e("  s_waitcnt lgkmcnt(0)")
dma_go()
dma_rd()
e("  s_waitcnt lgkmcnt(0)")
dma_go()
dma_rd()
gathers(0)
addrs(0)
e("  s_setprio 2")
e("  s_waitcnt vmcnt(5)")
frags(0)
L("K1_LOOP")
e("  s_cmp_lt_u32 s39, s46")
e("  s_cbranch_scc1 K1_PR")
e("  s_setprio 1")
e("  s_cmp_lt_u32 s39, s47")
e("  s_cbranch_scc1 K1_PR")
e("  s_setprio 0")
L("K1_PR")
if 'I' in X:
    e("  s_memtime s[84:85]")
    e("  s_waitcnt lgkmcnt(0)")
    e("  s_sub_u32 s84, s84, s70")
    e("  s_lshr_b32 s86, s39, 2")
    e("  s_mov_b32 m0, s86")
    e("  v_writelane_b32 v14, s84, m0")
step(0)
e("  s_add_u32 s39, s39, 2")
e("  s_cmp_ge_u32 s39, s38")
e("  s_cbranch_scc1 K1_RDONE")
step(1)
e("  s_add_u32 s39, s39, 2")
e("  s_cmp_lt_u32 s39, s38")
e("  s_cbranch_scc1 K1_LOOP")
L("K1_RDONE")
e("  s_setprio 3")
if 'I' in X: e("  v_mov_b32 v127, v14")
e("  s_waitcnt vmcnt(0) lgkmcnt(0)")
if 'T' in X:
    e("  s_memtime s[74:75]")
e("  s_barrier")
e("  s_waitcnt vmcnt(0)")
e("  s_cmp_lt_i32 s36, 0")
e("  s_cbranch_scc1 K1_ROUND")
e("  s_nop 7")
e(f"  v_mul_u32_u24 v6, {4*RBS}, v2")
e("  v_lshl_add_u32 v6, v1, 2, v6")
e(f"  s_mul_i32 s33, s14, {16*RBS}")
e("  s_lshl_b32 s34, s13, 8")
e("  s_add_u32 s33, s33, s34")
e("  v_add_u32 v6, s33, v6")
for jl in range(4):
    for i in range(4):
        e(f"  ds_write_b32 v6, v{ACC+4*jl+i} offset:{i*RBS+jl*64}")
e("  s_waitcnt lgkmcnt(0)")
e("  s_barrier")
e("  v_lshrrev_b32 v6, 4, v0")
e(f"  v_mul_u32_u24 v7, {RBS}, v6")
e("  v_lshl_add_u32 v7, v1, 5, v7")
e("  ds_read_b128 v[64:67], v7")
e("  ds_read_b128 v[68:71], v7 offset:16")
e(f"  ds_read_b128 v[72:75], v7 offset:{16*RBS}")
e(f"  ds_read_b128 v[76:79], v7 offset:{16*RBS+16}")
e(f"  s_mov_b32 s33, {NLOG2E}")
e("  s_waitcnt lgkmcnt(0)")
for r in range(8):
    e(f"  v_add_f32 v{64+r}, v{64+r}, v{72+r}")
for r in range(8):
    e(f"  v_mul_f32 v{72+r}, s33, v{64+r}")
for r in range(8):
    e(f"  v_exp_f32 v{72+r}, v{72+r}")
e("  s_nop 0")
for r in range(8):
    e(f"  v_add_f32 v{72+r}, 1.0, v{72+r}")
for r in range(8):
    e(f"  v_rcp_f32 v{72+r}, v{72+r}")
e("  s_nop 0")
for r in range(8):
    e(f"  v_mul_f32 v{64+r}, v{64+r}, v{72+r}")
for r in range(4):
    e(f"  v_cvt_pk_bf16_f32 v{80+r}, v{64+2*r}, v{65+2*r}")
e("  v_lshlrev_b32 v7, 8, v6")
e("  v_lshl_add_u32 v7, v1, 4, v7")
e("  s_lshl_b32 s33, s10, 8")
e("  v_cmp_gt_u32 vcc, s11, v6")
e("  s_and_saveexec_b64 s[30:31], vcc")
e("  s_cbranch_execz K1_DONE")
e("  buffer_store_dwordx4 v[80:83], v7, s[24:27], s33 offen")
if 'T' in X:
    e("  s_waitcnt vmcnt(0)")
    e("  s_memtime s[76:77]")
    e("  s_memrealtime s[82:83]")
    e("  s_waitcnt lgkmcnt(0)")
    e("  s_mov_b32 s2, s15")
    e("  s_and_b32 s3, s2, 127")
    e("  s_cmp_lg_u32 s3, 0")
    e("  s_cbranch_scc1 K1_DONE")
    e("  s_cmp_lg_u32 s12, 0")
    e("  s_cbranch_scc1 K1_DONE")
    e("  s_lshr_b32 s3, s2, 7")
    e("  s_lshl_b32 s3, s3, 5")
    e("  v_mov_b32 v1, s3")
    e("  s_sub_u32 s72, s72, s70")
    e("  s_sub_u32 s74, s74, s70")
    e("  s_sub_u32 s76, s76, s70")
    e("  s_sub_u32 s82, s82, s78")
    e("  v_mov_b32 v2, s72")
    e("  v_mov_b32 v3, s74")
    e("  v_mov_b32 v4, s76")
    e("  v_mov_b32 v5, s82")
    e("  v_mov_b32 v6, s78")
    e("  v_mov_b32 v7, s38")
    if 'I' in X:
        e("  s_mov_b64 exec, 0xff")
        e("  v_mbcnt_lo_u32_b32 v8, -1, 0")
        e("  v_lshlrev_b32 v8, 2, v8")
        e("  v_add_u32 v8, v8, v1")
        e("  global_store_dword v8, v127, s[80:81] offset:256")
    e("  s_mov_b64 exec, 1")
    e("  global_store_dwordx4 v1, v[2:5], s[80:81]")
    e("  global_store_dwordx2 v1, v[6:7], s[80:81] offset:16")
L("K1_DONE")
e("  s_endpgm")

e('.section .rodata,"a"')
for name, nv in (("mpnn_prep_kernel", 192), ("mpnn_main_kernel", 128)):
    e(".p2align 6")
    e(f".amdhsa_kernel {name}")
    e(f"  .amdhsa_next_free_vgpr {nv}")
    e("  .amdhsa_next_free_sgpr 96")
    e(f"  .amdhsa_accum_offset {nv}")
    e("  .amdhsa_group_segment_fixed_size 0")
    e("  .amdhsa_kernarg_size 80")
    e("  .amdhsa_user_sgpr_count 2")
    e("  .amdhsa_user_sgpr_kernarg_segment_ptr 1")
    e("  .amdhsa_system_sgpr_workgroup_id_x 1")
    e(".end_amdhsa_kernel")

path = sys.argv[1] if len(sys.argv) > 1 else "standalone__edge_featured_mpnn_egc__graph.s"
open(path, "w").write("\n".join(out) + "\n")
print("wrote", path, "WS_END", WS_END, "K1_LDS", K1_LDS)
```

```python
import sys, os
NW1 = int(os.environ.get('NW1', '0'))
NW2 = int(os.environ.get('NW2', '0'))
X = os.environ.get('X', '')

N = 12500
E = 400000
NPAD = 12544
CH = 4096
NW = 98
EPT = 16
TK = 20
NG0 = 196 + NW + 1
NB = 1024
OROW = 2052
T1 = 0
T2 = T1 + NPAD * 512
T3 = T2 + (NPAD + 16) * 256
RR = T3 + NPAD * 256
OO = RR + NW * CH * 4
WS_END = OO + NW * OROW * 4 + 256
M2 = 703687442
NLOG2E = 0xBFB8AA3B

out = []
def e(s=""):
    out.append(s)
def L(name):
    out.append(name + ":")

def srd(d, lo, hi, nbytes):
    e(f"  s_mov_b32 s{d}, s{lo}")
    e(f"  s_and_b32 s{d+1}, s{hi}, 0xffff")
    e(f"  s_mov_b32 s{d+2}, {nbytes}")
    e(f"  s_mov_b32 s{d+3}, 0x00020000")

def wave_scan(x, t):
    for ctrl in ("row_shr:1", "row_shr:2", "row_shr:4", "row_shr:8"):
        e(f"  v_mov_b32 v{t}, 0")
        e("  s_nop 1")
        e(f"  v_mov_b32_dpp v{t}, v{x} {ctrl} row_mask:0xf bank_mask:0xf")
        e(f"  v_add_u32 v{x}, v{x}, v{t}")
    e(f"  v_mov_b32 v{t}, 0")
    e("  s_nop 1")
    e(f"  v_mov_b32_dpp v{t}, v{x} row_bcast:15 row_mask:0xa bank_mask:0xf")
    e(f"  v_add_u32 v{x}, v{x}, v{t}")
    e(f"  v_mov_b32 v{t}, 0")
    e("  s_nop 1")
    e(f"  v_mov_b32_dpp v{t}, v{x} row_bcast:31 row_mask:0xc bank_mask:0xf")
    e(f"  v_add_u32 v{x}, v{x}, v{t}")

K0_LDS = 2 * 128 * 288
CAP = NW * TK
LIST_N = CAP + 256
L_LIST0 = 0
L_LIST1 = L_LIST0 + LIST_N * 4
L_EA = L_LIST1 + LIST_N * 4
L_OH = L_EA + 16384
L_S = L_OH + 25 * 16
L_WT = L_S + 4 * 17 * 48
K1_LDS = L_WT + 32
RBS = 528
assert 2 * 16 * RBS <= L_OH

hdr = open("standalone__edge_featured_mpnn_egc__graph.s.ref").read().split("\n")
for line in hdr:
    if line.startswith("; @launch"):
        break
    e(line)
e(f"; @launch kernel=mpnn_prep_kernel grid=({NG0},1,1) block=(256,1,1) lds={K0_LDS}")
e(f"; @launch kernel=mpnn_main_kernel grid=({NB},1,1) block=(256,1,1) lds={K1_LDS}")
e('.amdgcn_target "amdgcn-amd-amdhsa--gfx950"')
e(".text")

e(".globl mpnn_prep_kernel")
e(".p2align 8")
e(".type mpnn_prep_kernel,@function")
L("mpnn_prep_kernel")
e(f"  s_cmp_ge_u32 s2, {NG0}")
e("  s_cbranch_scc1 K0_DONE")
e("  s_load_dwordx4 s[4:7], s[0:1], 0")
e("  s_load_dwordx4 s[8:11], s[0:1], 16")
e("  s_load_dwordx4 s[12:15], s[0:1], 32")
e("  s_load_dwordx2 s[16:17], s[0:1], 48")
e("  s_load_dwordx2 s[18:19], s[0:1], 72")
if 'K' in X:
    e("  s_load_dwordx2 s[80:81], s[0:1], 64")
    e("  s_memrealtime s[70:71]")
e("  s_waitcnt lgkmcnt(0)")
srd(20, 18, 19, WS_END)
e("  s_cmp_lt_u32 s2, 196")
e("  s_cbranch_scc1 K0_GEMM")
e(f"  s_cmp_lt_u32 s2, {196+NW}")
e("  s_cbranch_scc1 K0_BIN")
srd(24, 16, 17, 272 * 256)
e("  v_lshrrev_b32 v1, 4, v0")
e("  v_and_b32 v2, 15, v0")
e("  v_lshlrev_b32 v3, 8, v1")
e("  v_lshl_add_u32 v3, v2, 1, v3")
e("  v_add_u32 v3, 65536, v3")
for j in range(8):
    e(f"  buffer_load_ushort v{8+j}, v3, s[24:27], 0 offen offset:{j*32}")
e(f"  s_mov_b32 s28, {NLOG2E}")
e("  v_lshlrev_b32 v4, 8, v1")
e("  v_lshl_add_u32 v4, v2, 3, v4")
e(f"  v_add_u32 v4, {T2 + NPAD*256}, v4")
e("  s_waitcnt vmcnt(0)")
for j in range(8):
    e(f"  v_lshlrev_b32 v{8+j}, 16, v{8+j}")
    e(f"  v_mul_f32 v{8+j}, s28, v{8+j}")
for r in range(4):
    e(f"  v_cvt_pk_bf16_f32 v{16+r}, v{8+2*r}, v{9+2*r}")
e("  buffer_store_dwordx2 v[16:17], v4, s[20:23], 0 offen")
e("  buffer_store_dwordx2 v[18:19], v4, s[20:23], 0 offen offset:128")
e("  s_endpgm")

L("K0_BIN")
e("  s_sub_u32 s3, s2, 196")
srd(24, 8, 9, E * 4)
srd(28, 10, 11, E * 4)
e("  s_lshl_b32 s32, s3, 14")
e("  v_lshlrev_b32 v1, 6, v0")
VD, VS, VB, VK, VR, VT = 4, 20, 36, 52, 68, 84
for k in range(4):
    e(f"  buffer_load_dwordx4 v[{VD+4*k}:{VD+4*k+3}], v1, s[28:31], s32 offen offset:{16*k}")
for k in range(4):
    e(f"  buffer_load_dwordx4 v[{VS+4*k}:{VS+4*k+3}], v1, s[24:27], s32 offen offset:{16*k}")
BWT = 16640
BREC = 16896
for r in range(4):
    e(f"  v_mov_b32 v{100+r}, 0")
e("  v_lshlrev_b32 v2, 4, v0")
e("  ds_write_b128 v2, v[100:103]")
e("  ds_write_b128 v2, v[100:103] offset:4096")
e("  ds_write_b128 v2, v[100:103] offset:8192")
e("  ds_write_b128 v2, v[100:103] offset:12288")
e("  ds_write_b128 v2, v[100:103] offset:16384")
e("  s_mov_b32 s42, 1374390")
e("  s_lshl_b32 s33, s3, 12")
e(f"  s_sub_u32 s33, {E}, s33")
e(f"  s_min_u32 s33, s33, {CH}")
e("  s_lshr_b32 s34, s33, 4")
e(f"  s_mov_b32 s35, {M2}")
e("  s_movk_i32 s41, 6250")
e("  v_mov_b32 v3, 1")
e("  s_waitcnt lgkmcnt(0)")
e("  s_barrier")
e("  s_waitcnt vmcnt(0)")
e("  v_cmp_gt_u32 vcc, s34, v0")
e("  s_and_saveexec_b64 s[36:37], vcc")
e("  s_cbranch_execz K0_B1")
for k in range(EPT):
    e(f"  v_lshrrev_b32 v{VB+k}, 1, v{VD+k}")
    e(f"  v_mul_hi_u32 v{VB+k}, v{VB+k}, s35")
    e(f"  v_mul_hi_u32 v{VR+k}, v{VS+k}, s42")
    e(f"  v_lshl_add_u32 v{VK+k}, v{VB+k}, 2, v{VR+k}")
    e(f"  v_lshlrev_b32 v{VK+k}, 2, v{VK+k}")
    e(f"  ds_add_rtn_u32 v{VR+k}, v{VK+k}, v3")
L("K0_B1")
e("  s_mov_b64 exec, s[36:37]")
e("  s_waitcnt lgkmcnt(0)")
e("  s_barrier")
e("  v_lshlrev_b32 v1, 6, v0")
for k in range(4):
    e(f"  ds_read_b128 v[{128+4*k}:{131+4*k}], v1 offset:{16*k}")
e("  s_waitcnt lgkmcnt(0)")
e("  v_mov_b32 v144, 0")
e("  v_mov_b32 v145, v128")
for r in range(2, 16):
    e(f"  v_add_u32 v{144+r}, v{143+r}, v{127+r}")
e("  v_add_u32 v112, v159, v143")
e("  v_mov_b32 v113, v112")
wave_scan(113, 114)
e("  v_lshrrev_b32 v115, 6, v0")
e("  v_lshlrev_b32 v114, 2, v115")
e("  v_and_b32 v116, 63, v0")
e("  v_cmp_eq_u32 vcc, 63, v116")
e("  s_and_saveexec_b64 s[38:39], vcc")
e(f"  ds_write_b32 v114, v113 offset:{BWT}")
e("  s_mov_b64 exec, s[38:39]")
e("  s_waitcnt lgkmcnt(0)")
e("  s_barrier")
e("  v_mov_b32 v116, 0")
e(f"  ds_read_b128 v[116:119], v116 offset:{BWT}")
e("  s_waitcnt lgkmcnt(0)")
e("  v_cmp_lt_u32 vcc, 0, v115")
e("  s_nop 1")
e("  v_cndmask_b32 v116, 0, v116, vcc")
e("  v_cmp_lt_u32 vcc, 1, v115")
e("  s_nop 1")
e("  v_cndmask_b32 v117, 0, v117, vcc")
e("  v_cmp_lt_u32 vcc, 2, v115")
e("  s_nop 1")
e("  v_cndmask_b32 v118, 0, v118, vcc")
e("  v_add3_u32 v116, v116, v117, v118")
e("  v_add_u32 v116, v116, v113")
e("  v_sub_u32 v117, v116, v112")
for r in range(16):
    e(f"  v_add_u32 v{144+r}, v{144+r}, v117")
for k in range(4):
    e(f"  ds_write_b128 v1, v[{144+4*k}:{147+4*k}] offset:{16*k}")
e(f"  s_mul_i32 s40, s3, {OROW*4}")
e(f"  s_add_u32 s40, s40, {OO}")
for r in range(8):
    e(f"  v_lshl_or_b32 v{128+r}, v{145+2*r}, 16, v{144+2*r}")
e("  v_lshlrev_b32 v114, 5, v0")
e("  buffer_store_dwordx4 v[128:131], v114, s[20:23], s40 offen" + os.environ.get('STF2', ''))
e("  buffer_store_dwordx4 v[132:135], v114, s[20:23], s40 offen offset:16" + os.environ.get('STF2', ''))
e("  v_cmp_eq_u32 vcc, 255, v0")
e("  s_and_saveexec_b64 s[38:39], vcc")
e("  s_cbranch_execz K0_B2")
e("  buffer_store_dword v116, v114, s[20:23], s40 offen offset:32")
L("K0_B2")
e("  s_mov_b64 exec, s[38:39]")
e("  s_waitcnt lgkmcnt(0)")
e("  s_barrier")
e("  s_mov_b64 exec, s[36:37]")
e("  v_cmp_gt_u32 vcc, s34, v0")
e("  s_and_saveexec_b64 s[36:37], vcc")
e("  s_cbranch_execz K0_B3")
for k in range(EPT):
    e(f"  ds_read_b32 v{VT+k}, v{VK+k}")
e("  v_lshlrev_b32 v1, 4, v0")
for k in range(EPT):
    e(f"  v_mul_u32_u24 v{VB+k}, s41, v{VB+k}")
    e(f"  v_add_u32 v{VB+k}, 1023, v{VB+k}")
    e(f"  v_lshrrev_b32 v{VB+k}, 10, v{VB+k}")
    e(f"  v_lshlrev_b32 v{VB+k}, 1, v{VB+k}")
    e(f"  v_sub_u32 v{VB+k}, v{VD+k}, v{VB+k}")
    e(f"  v_lshl_or_b32 v{VB+k}, v{VS+k}, 18, v{VB+k}")
    e(f"  v_add_u32 v{VD+k}, {k}, v1")
    e(f"  v_lshl_or_b32 v{VB+k}, v{VD+k}, 6, v{VB+k}")
e("  s_waitcnt lgkmcnt(0)")
for k in range(EPT):
    e(f"  v_add_lshl_u32 v{VT+k}, v{VT+k}, v{VR+k}, 2")
    e(f"  ds_write_b32 v{VT+k}, v{VB+k} offset:{BREC}")
L("K0_B3")
e("  s_mov_b64 exec, s[36:37]")
e("  s_waitcnt lgkmcnt(0)")
e("  s_barrier")
e("  v_lshlrev_b32 v1, 4, v0")
for k in range(4):
    e(f"  ds_read_b128 v[{4+4*k}:{7+4*k}], v1 offset:{BREC+4096*k}")
e(f"  s_add_u32 s32, s32, {RR}")
e("  s_waitcnt lgkmcnt(0)")
for k in range(4):
    e(f"  buffer_store_dwordx4 v[{4+4*k}:{7+4*k}], v1, s[20:23], s32 offen" + os.environ.get('STF2', ''))
    e("  s_add_u32 s32, s32, 4096")
if 'K' in X:
    e("  s_waitcnt vmcnt(0)")
    e("  s_memrealtime s[72:73]")
    e("  s_waitcnt lgkmcnt(0)")
    e("  s_and_b32 s74, s2, 31")
    e("  s_cmp_lg_u32 s74, 0")
    e("  s_cbranch_scc1 K0_DONE")
    e("  s_lshr_b32 s74, s2, 5")
    e("  s_lshl_b32 s74, s74, 3")
    e("  v_mov_b32 v1, s74")
    e("  v_mov_b32 v2, s70")
    e("  v_mov_b32 v3, s72")
    e("  v_cmp_eq_u32 vcc, 0, v0")
    e("  s_and_saveexec_b64 s[76:77], vcc")
    e("  s_cbranch_execz K0_DONE")
    e("  global_store_dwordx2 v1, v[2:3], s[80:81]")
e("  s_endpgm")

L("K0_GEMM")
e("  s_and_b32 s3, s2, 1")
e("  s_lshr_b32 s33, s2, 1")
e("  s_lshl_b32 s34, s3, 15")
e("  s_add_u32 s16, s16, s34")
e("  s_addc_u32 s17, s17, 0")
srd(24, 16, 17, 32768)
e("  s_cmp_eq_u32 s3, 0")
e("  s_cselect_b32 s34, s12, s14")
e("  s_cselect_b32 s35, s13, s15")
srd(28, 34, 35, 32768)
srd(36, 4, 5, N * 256)
e("  v_lshlrev_b32 v1, 4, v0")
for it in range(8):
    e(f"  s_mov_b32 s40, {it*4096}")
    e(f"  buffer_load_dwordx4 v[{64+4*it}:{67+4*it}], v1, s[24:27], s40 offen")
for it in range(8):
    e(f"  s_mov_b32 s40, {it*4096}")
    e(f"  buffer_load_dwordx4 v[{96+4*it}:{99+4*it}], v1, s[28:31], s40 offen")
e("  v_and_b32 v2, 15, v0")
e("  v_bfe_u32 v3, v0, 4, 2")
e("  v_lshrrev_b32 v4, 6, v0")
e("  s_lshl_b32 s41, s33, 7")
e("  v_lshlrev_b32 v5, 5, v4")
e("  v_add3_u32 v5, v5, v2, s41")
e("  v_lshlrev_b32 v6, 8, v5")
e("  v_lshl_add_u32 v6, v3, 4, v6")
e("  v_add_u32 v7, 4096, v6")
for tau in range(2):
    for s in range(4):
        r = 32 + 16 * tau + 4 * s
        e(f"  buffer_load_dwordx4 v[{r}:{r+3}], v{6+tau}, s[36:39], 0 offen offset:{s*64}")
e("  v_lshrrev_b32 v8, 4, v0")
e("  v_mul_u32_u24 v8, 288, v8")
e("  v_lshl_add_u32 v8, v2, 4, v8")
e("  v_add_u32 v9, 36864, v8")
e("  s_waitcnt vmcnt(16)")
for it in range(8):
    e(f"  ds_write_b128 v8, v[{64+4*it}:{67+4*it}] offset:{it*4608}")
e("  s_waitcnt vmcnt(8)")
for it in range(8):
    e(f"  ds_write_b128 v9, v[{96+4*it}:{99+4*it}] offset:{it*4608}")
e("  v_lshrrev_b32 v10, 2, v2")
e("  v_lshl_add_u32 v10, v3, 3, v10")
e("  v_mul_u32_u24 v10, 288, v10")
e("  v_and_b32 v11, 3, v2")
e("  v_lshl_add_u32 v10, v11, 3, v10")
e("  v_add_u32 v11, 36864, v10")
e(f"  s_mov_b32 s42, {NLOG2E}")
e("  v_lshlrev_b32 v12, 5, v4")
e("  v_lshl_add_u32 v12, v3, 2, v12")
e("  v_add_u32 v12, s41, v12")
e("  s_waitcnt lgkmcnt(0)")
e("  s_barrier")
FR = 64
AC = 128
ST = 160
FIRST_TR = len(out)
e("  s_waitcnt vmcnt(0)")
e("  s_cmp_eq_u32 s3, 1")
e("  s_cbranch_scc1 K0_GEMM1")
def gemm_tr(mat, hh):
    base = 10 + mat
    for jl in range(4):
        j = 4 * hh + jl
        for s_ in range(4):
            r = FR + 16 * jl + 4 * s_
            off = s_ * 32 * 288 + j * 32
            e(f"  ds_read_b64_tr_b16 v[{r}:{r+1}], v{base} offset:{off}")
            e(f"  ds_read_b64_tr_b16 v[{r+2}:{r+3}], v{base} offset:{off+4*288}")
def gemm_mm(nxt):
    e("  s_waitcnt lgkmcnt(0)")
    for s_ in range(4):
        for tau in range(2):
            for jl in range(4):
                a = AC + 16 * tau + 4 * jl
                xr = 32 + 16 * tau + 4 * s_
                fr = FR + 16 * jl + 4 * s_
                c = "0" if s_ == 0 else f"v[{a}:{a+3}]"
                e(f"  v_mfma_f32_16x16x32_bf16 v[{a}:{a+3}], v[{xr}:{xr+3}], v[{fr}:{fr+3}], {c}")
    e("  s_nop 7")
    e("  s_nop 1")
    if nxt is not None:
        gemm_tr(*nxt)
def gemm_mat(mat, hh):
    nxt = (1, hh) if mat == 0 else ((0, 1) if hh == 0 else None)
    gemm_mm(nxt)

def scale_acc():
    for r in range(32):
        e(f"  v_mul_f32 v{AC+r}, s42, v{AC+r}")

_save = out[FIRST_TR:]
del out[FIRST_TR:]
gemm_tr(0, 0)
out.extend(_save)
e("  v_lshlrev_b32 v14, 8, v12")
e("  v_lshl_add_u32 v14, v2, 3, v14")
e("  v_add_u32 v15, 4096, v14")
e(f"  s_mov_b32 s44, {T2}")
e(f"  s_mov_b32 s45, {T3}")
for hh in range(2):
    for mat in range(2):
        gemm_mat(mat, hh)
        if mat == 0: scale_acc()
        for tau in range(2):
            for i in range(4):
                a = AC + 16 * tau + i
                st = ST + 16 * mat + 8 * tau + 2 * i
                e(f"  v_cvt_pk_bf16_f32 v{st}, v{a}, v{a+4}")
                e(f"  v_cvt_pk_bf16_f32 v{st+1}, v{a+8}, v{a+12}")
        for tau in range(2):
            for i in range(4):
                st = ST + 16 * mat + 8 * tau + 2 * i
                e(f"  buffer_store_dwordx2 v[{st}:{st+1}], v{14+tau}, s[20:23], s{44+mat} offen offset:{i*256+hh*128}" + os.environ.get('STF', ' sc0 sc1'))
e("  s_endpgm")

L("K0_GEMM1")
e("  s_mov_b32 s45, 0xffff0000")
e("  s_mov_b32 s46, 0x80000000")
e("  v_lshlrev_b32 v14, 9, v12")
e("  v_lshl_add_u32 v14, v2, 4, v14")
e("  v_add_u32 v15, 8192, v14")
for hh in range(2):
    gemm_mat(0, hh)
    scale_acc()
    for tau in range(2):
        for i in range(4):
            a = AC + 16 * tau + i
            st = ST + 16 * tau + 4 * i
            e(f"  v_cvt_pk_bf16_f32 v{st}, v{a}, v{a+4}")
            e(f"  v_cvt_pk_bf16_f32 v{st+1}, v{a+8}, v{a+12}")
    gemm_mat(1, hh)
    for tau in range(2):
        for i in range(4):
            a = AC + 16 * tau + i
            st = ST + 16 * tau + 4 * i
            for d, (ev, od) in enumerate(((a, a + 4), (a + 8, a + 12))):
                e(f"  v_cvt_pk_bf16_f32 v16, v{ev}, v{ev}")
                e("  v_and_b32 v16, 0xffff, v16")
                e(f"  v_and_b32 v17, 0x7fffffff, v{od}")
                e("  v_add_u32 v17, 0x8000, v17")
                e("  v_max_u32 v17, v17, v16")
                e("  v_sub_u32 v17, v17, v16")
                e("  v_and_or_b32 v17, v17, s45, v16")
                e(f"  v_bfi_b32 v{st+2+d}, s46, v{od}, v17")
    for tau in range(2):
        for i in range(4):
            st = ST + 16 * tau + 4 * i
            e(f"  buffer_store_dwordx4 v[{st}:{st+3}], v{14+tau}, s[20:23], 0 offen offset:{i*512+hh*256}" + os.environ.get('STF', ' sc0 sc1'))
    e("  s_nop 1")
L("K0_DONE")
e("  s_endpgm")

e(".globl mpnn_main_kernel")
e(".p2align 8")
e(".type mpnn_main_kernel,@function")
L("mpnn_main_kernel")
e(f"  s_cmp_ge_u32 s2, {NB}")
e("  s_cbranch_scc1 K1_DONE")
e("  s_setprio 3")
e("  s_mov_b32 s15, s2")
e("  s_and_b32 s3, s2, 7")
e("  s_lshl_b32 s3, s3, 7")
e("  s_lshr_b32 s2, s2, 3")
e("  s_add_u32 s2, s2, s3")
e("  s_load_dwordx2 s[4:5], s[0:1], 8")
e("  s_load_dwordx2 s[6:7], s[0:1], 56")
e("  s_load_dwordx2 s[8:9], s[0:1], 72")
if 'T' in X:
    e("  s_load_dwordx2 s[80:81], s[0:1], 64")
    e("  s_memtime s[70:71]")
    e("  s_memrealtime s[78:79]")
e("  s_mul_i32 s3, s2, 6250")
e("  s_add_u32 s10, s3, 1023")
e("  s_lshr_b32 s10, s10, 10")
e("  s_add_u32 s11, s3, 7273")
e("  s_lshr_b32 s11, s11, 10")
e("  s_sub_u32 s11, s11, s10")
e("  s_lshl_b32 s11, s11, 1")
e("  s_lshl_b32 s10, s10, 1")
V_N, V_Q, V_T = 1, 2, 3
e("  v_and_b32 v1, 15, v0")
e("  v_bfe_u32 v2, v0, 4, 2")
e("  v_readfirstlane_b32 s12, v0")
e("  s_nop 3")
e("  s_lshr_b32 s12, s12, 6")
e("  s_and_b32 s13, s12, 1")
e("  s_lshr_b32 s14, s12, 1")
e("  s_waitcnt lgkmcnt(0)")
if 'J' in X:
    e("  s_memtime s[84:85]")
    e("  s_waitcnt lgkmcnt(0)")
    e("  s_sub_u32 s86, s84, s70")
srd(16, 8, 9, WS_END)
srd(20, 4, 5, E * 32)
srd(24, 6, 7, N * 256)
e(f"  v_mul_u32_u24 v3, {OROW*4}, v0")
e("  s_lshl_b32 s28, s2, 3")
e(f"  s_add_u32 s28, s28, {OO}")
e("  v_mov_b32 v96, 0")
e("  v_mov_b32 v97, 0")
e("  v_mov_b32 v98, 0")
e(f"  v_cmp_gt_u32 vcc, {NW}, v0")
e("  s_and_saveexec_b64 s[30:31], vcc")
e("  s_cbranch_execz K1_P0")
e("  buffer_load_dwordx3 v[96:98], v3, s[16:19], s28 offen")
L("K1_P0")
e("  s_mov_b64 exec, s[30:31]")
if 'P' in X:
    e("  s_mul_i32 s33, s2, 12544")
    e("  v_lshlrev_b32 v6, 4, v0")
    for i in range(3):
        e(f"  buffer_load_dwordx4 v[{56+4*i}:{59+4*i}], v6, s[20:23], s33 offen")
        e("  s_add_u32 s33, s33, 4096")
    e("  v_cmp_gt_u32 vcc, 16, v0")
    e("  s_and_saveexec_b64 s[30:31], vcc")
    e("  s_cbranch_execz K1_P0B")
    e("  buffer_load_dwordx4 v[68:71], v6, s[20:23], s33 offen")
    L("K1_P0B")
    e("  s_mov_b64 exec, s[30:31]")
BF = 16
ACC = 32
e("  s_lshr_b32 s53, s15, 3")
e(f"  s_mul_i32 s53, s53, {(NW1+NW2)*4096}")
e("  v_lshlrev_b32 v121, 4, v0")
for i in range(NW1):
    e("  buffer_load_dwordx4 v[72:75], v121, s[16:19], s53 offen")
    e("  s_add_u32 s53, s53, 4096")
e("  v_lshrrev_b32 v6, 2, v0")
e("  v_and_b32 v7, 3, v0")
e("  v_lshlrev_b32 v7, 1, v7")
e("  v_add_u32 v7, 8, v7")
e("  v_mov_b32 v9, 0x3f80")
e("  v_mov_b32 v10, 0x3f800000")
e("  v_cmp_eq_u32 vcc, v6, v7")
e("  s_nop 1")
e("  v_cndmask_b32 v8, 0, v9, vcc")
e("  v_add_u32 v7, 1, v7")
e("  v_cmp_eq_u32 vcc, v6, v7")
e("  s_nop 1")
e("  v_cndmask_b32 v8, v8, v10, vcc")
e("  v_lshlrev_b32 v6, 2, v0")
e("  v_cmp_gt_u32 vcc, 100, v0")
e("  s_and_saveexec_b64 s[30:31], vcc")
e(f"  ds_write_b32 v6, v8 offset:{L_OH}")
e("  s_mov_b64 exec, s[30:31]")
for r in range(4):
    e(f"  v_mov_b32 v{12+r}, 0")
e("  v_lshlrev_b32 v6, 4, v0")
e("  v_cmp_gt_u32 vcc, 204, v0")
e("  s_and_saveexec_b64 s[30:31], vcc")
e(f"  ds_write_b128 v6, v[12:15] offset:{L_S}")
e("  s_mov_b64 exec, s[30:31]")
V_LOFF = 48
V_Q16 = 49
V_OHC = 50
V_SC = 51
V_SR = 52
V_LO = 53
V_LR = 54
V_ONE = 55
V_ZERO = 12
V_MASK = 15
V_AB = 122
V_AI = 123
V_DI = 124
V_H16 = 125
W0, W1 = 100, 101
e("  s_lshl_b32 s33, s13, 8")
e(f"  v_lshlrev_b32 v{V_LOFF}, 4, v1")
if 'H' not in X: e(f"  v_add_u32 v{V_LOFF}, s33, v{V_LOFF}")
e(f"  v_lshlrev_b32 v{V_OHC}, 7, v2")
e(f"  v_sub_u32 v{V_OHC}, {L_OH+384}, v{V_OHC}")
e("  v_cmp_gt_u32 vcc, 2, v2")
e(f"  v_mov_b32 v6, 512")
e("  s_nop 0")
e(f"  v_cndmask_b32 v{V_Q16}, 16, 0, vcc")
e(f"  v_cndmask_b32 v{V_AI}, 0, v6, vcc")
e("  s_mul_i32 s33, s12, 816")
e(f"  s_add_u32 s33, s33, {L_S}")
e(f"  v_lshlrev_b32 v{V_SC}, 1, v1")
e(f"  v_add_u32 v{V_SC}, s33, v{V_SC}")
e(f"  v_mul_u32_u24 v{V_SR}, 48, v1")
e(f"  v_lshl_add_u32 v{V_SR}, v2, 3, v{V_SR}")
e(f"  v_add_u32 v{V_SR}, s33, v{V_SR}")
e(f"  v_mov_b32 v{V_ONE}, 0x3f80")
e(f"  v_mov_b32 v{V_MASK}, 0xffff0000")
e("  s_mov_b32 s40, 0xfffffe00")
e("  s_mov_b32 s45, 0x7e00" if 'B' in X else "  s_mov_b32 s45, 0xfffffe00")
e("  s_mov_b32 s41, 0xffff0000")
e(f"  s_waitcnt vmcnt({NW1})")
if 'J' in X:
    e("  s_memtime s[84:85]")
    e("  s_waitcnt lgkmcnt(0)")
    e("  s_sub_u32 s87, s84, s70")
e("  v_and_b32 v4, 0xffff, v96")
e("  v_lshrrev_b32 v5, 16, v96")
e("  v_lshl_or_b32 v5, v97, 16, v5")
e("  v_lshrrev_b32 v3, 16, v97")
e("  v_and_b32 v11, 0xffff, v98")
e("  s_mov_b32 s62, 1")
L("K1_ROUND")
e("  v_sub_u32 v6, v11, v4")
e(f"  v_min_u32 v7, {TK}, v6")
e("  v_lshlrev_b32 v96, 14, v0")
e("  v_lshl_add_u32 v96, v4, 2, v96")
e(f"  s_mov_b32 s33, {RR}")
e("  s_mov_b64 s[30:31], exec")
for k in range(TK // 4):
    e(f"  v_cmp_lt_u32 vcc, {4*k}, v7")
    e("  s_and_b64 exec, exec, vcc")
    e("  s_cbranch_execz K1_R1")
    e(f"  buffer_load_dwordx4 v[{56+4*k}:{59+4*k}], v96, s[16:19], s33 offen offset:{16*k}")
for k in range(0):
    e(f"  buffer_load_dwordx4 v[{56+4*k}:{59+4*k}], v96, s[16:19], s33 offen offset:{16*k}")
L("K1_R1")
e("  s_mov_b64 exec, s[30:31]")
e("  s_cmp_eq_u32 s62, 0")
e("  s_cbranch_scc1 K1_R2")
e("  v_lshlrev_b32 v109, 11, v2")
e("  v_lshl_add_u32 v109, v1, 3, v109")
e("  s_lshl_b32 s33, s10, 8")
e("  s_sub_u32 s33, s33, 4096")
e("  v_mov_b32 v110, s33")
e(f"  v_mov_b32 v111, {NPAD*256}")
e("  v_cmp_gt_u32 vcc, 2, v2")
e("  s_lshl_b32 s34, s13, 7")
e(f"  s_add_u32 s34, s34, {T2}")
e("  v_cndmask_b32 v110, v110, v111, vcc")
e("  v_add_u32 v109, v109, v110")
for jj in range(8):
    e(f"  buffer_load_dwordx2 v[{76+2*jj}:{77+2*jj}], v109, s[16:19], s34 offen offset:{jj*256}")
e("  v_lshlrev_b32 v110, 10, v2")
e("  v_lshl_add_u32 v110, v1, 3, v110")
e("  s_lshl_b32 s33, s10, 8")
e("  s_lshl_b32 s34, s13, 7")
e("  s_add_u32 s33, s33, s34")
e(f"  s_add_u32 s33, s33, {T3}")
XUR = [92, 94, 116, 118]
for i in range(4):
    e(f"  buffer_load_dwordx2 v[{XUR[i]}:{XUR[i]+1}], v110, s[16:19], s33 offen offset:{i*256}")
L("K1_R2")
e("  v_and_b32 v100, 0xffff, v5")
e("  v_lshrrev_b32 v101, 16, v5")
e("  v_mov_b32 v102, v3")
for k in range(3):
    e(f"  v_max_u32 v{100+k}, v{100+k}, v4")
    e(f"  v_sub_u32 v{100+k}, v{100+k}, v4")
    e(f"  v_min_u32 v{100+k}, v{100+k}, v7")
e("  v_sub_u32 v8, v101, v100")
e("  v_lshl_or_b32 v8, v8, 16, v100")
e("  v_sub_u32 v9, v102, v101")
e("  v_sub_u32 v10, v7, v102")
e("  v_lshl_or_b32 v9, v10, 16, v9")
e("  v_mov_b32 v103, v8")
e("  v_mov_b32 v104, v9")
wave_scan(8, 10)
wave_scan(9, 10)
e(f"  v_cmp_lt_u32 vcc, {TK}, v6")
e("  s_cmp_lg_u64 vcc, 0")
e("  s_cselect_b32 s34, 0x80000000, 0")
e("  v_or_b32 v98, s34, v8")
e("  v_mov_b32 v99, v9")
e("  s_lshl_b32 s35, s12, 3")
e("  v_mov_b32 v97, s35")
e("  v_and_b32 v13, 63, v0")
e("  v_cmp_eq_u32 vcc, 63, v13")
e("  s_and_saveexec_b64 s[30:31], vcc")
e(f"  ds_write_b64 v97, v[98:99] offset:{L_WT}")
e("  s_mov_b64 exec, s[30:31]")
e("  s_waitcnt lgkmcnt(0)")
e("  s_barrier")
if 'J' in X:
    e("  s_memtime s[84:85]")
    e("  s_waitcnt lgkmcnt(0)")
    e("  s_sub_u32 s88, s84, s70")
e(f"  ds_read_b128 v[112:115], v{V_ZERO} offset:{L_WT}")
e(f"  ds_read_b128 v[96:99], v{V_ZERO} offset:{L_WT+16}")
e("  s_waitcnt lgkmcnt(0)")
for r in range(8):
    e(f"  v_readfirstlane_b32 s{54+r}, v{(112+r) if r < 4 else (92+r)}")
e("  s_nop 3")
e("  s_or_b32 s36, s54, s56")
e("  s_or_b32 s36, s36, s58")
e("  s_or_b32 s36, s36, s60")
for r in (54, 56, 58, 60):
    e(f"  s_and_b32 s{r}, s{r}, 0x7fffffff")
e("  s_add_u32 s42, s54, s56")
e("  s_add_u32 s42, s42, s58")
e("  s_add_u32 s42, s42, s60")
e("  s_add_u32 s43, s55, s57")
e("  s_add_u32 s43, s43, s59")
e("  s_add_u32 s43, s43, s61")
for w, (ra, rb) in enumerate(((54, 55), (56, 57), (58, 59))):
    e(f"  s_cmp_gt_u32 s12, {w}")
    e(f"  s_cselect_b32 s{ra}, s{ra}, 0")
    e(f"  s_cselect_b32 s{rb}, s{rb}, 0")
e("  s_add_u32 s54, s54, s56")
e("  s_add_u32 s54, s54, s58")
e("  s_add_u32 s55, s55, s57")
e("  s_add_u32 s55, s55, s59")
e("  s_and_b32 s56, s42, 0xffff")
e("  s_lshr_b32 s57, s42, 16")
e("  s_add_u32 s57, s57, s56")
e("  s_and_b32 s58, s43, 0xffff")
e("  s_add_u32 s58, s58, s57")
e("  s_lshr_b32 s37, s43, 16")
e("  s_add_u32 s37, s37, s58")
e("  v_sub_u32 v8, v8, v103")
e("  v_add_u32 v8, s54, v8")
e("  v_sub_u32 v9, v9, v104")
e("  v_add_u32 v9, s55, v9")
e("  v_and_b32 v105, 0xffff, v8")
e("  v_lshlrev_b32 v105, 2, v105")
e("  v_lshrrev_b32 v106, 16, v8")
e("  v_add_u32 v106, s56, v106")
e("  v_sub_u32 v106, v106, v100")
e("  v_lshlrev_b32 v106, 2, v106")
e("  v_and_b32 v107, 0xffff, v9")
e("  v_add_u32 v107, s57, v107")
e("  v_sub_u32 v107, v107, v101")
e("  v_lshlrev_b32 v107, 2, v107")
e("  v_lshrrev_b32 v108, 16, v9")
e("  v_add_u32 v108, s58, v108")
e("  v_sub_u32 v108, v108, v102")
e("  v_lshlrev_b32 v108, 2, v108")
e("  v_lshlrev_b32 v97, 17, v0")
e("  v_add_u32 v98, s37, v0")
e("  v_lshlrev_b32 v98, 2, v98")
e("  v_mov_b32 v13, 16")
e(f"  ds_write_b32 v98, v13 offset:{L_LIST0}")
e(f"  ds_write_b32 v98, v{V_ZERO} offset:{L_LIST1}")
e("  s_cmp_eq_u32 s62, 0")
e("  s_cbranch_scc1 K1_R3")
e("  s_waitcnt vmcnt(12)")
e("  s_branch K1_R4")
L("K1_R3")
e("  s_waitcnt vmcnt(0)")
L("K1_R4")
if 'J' in X:
    e("  s_memtime s[84:85]")
    e("  s_waitcnt lgkmcnt(0)")
    e("  s_sub_u32 s89, s84, s70")
NPF = int(os.environ.get('NPF', '0'))
for j in range(NPF):
    e(f"  v_cmp_lt_u32 vcc, {j}, v7")
    e("  s_and_saveexec_b64 s[30:31], vcc")
    e(f"  s_cbranch_execz K1_PF{j}")
    e(f"  v_bfe_u32 v14, v{56+j}, 6, 12")
    e("  v_lshl_add_u32 v14, v14, 5, v97")
    e("  buffer_load_dword v121, v14, s[20:23], 0 offen")
    L(f"K1_PF{j}")
    e("  s_mov_b64 exec, s[30:31]")
for j in range(TK):
    e(f"  v_cmp_lt_u32 vcc, {j}, v7")
    e("  s_and_b64 exec, exec, vcc")
    e("  s_cbranch_execz K1_LD")
    e(f"  v_cmp_lt_u32 vcc, {j}, v102")
    e(f"  v_cmp_lt_u32 s[54:55], {j}, v101")
    e(f"  v_cmp_lt_u32 s[56:57], {j}, v100")
    e(f"  v_lshrrev_b32 v13, 9, v{56+j}")
    e("  v_cndmask_b32 v98, v108, v107, vcc")
    e("  v_and_b32 v13, s40, v13")
    e("  v_cndmask_b32 v98, v98, v106, s[54:55]")
    e(f"  v_and_or_b32 v13, v{56+j}, 31, v13")
    e("  v_cndmask_b32 v98, v98, v105, s[56:57]")
    e(f"  v_bfe_u32 v14, v{56+j}, 6, 12")
    e("  v_lshl_add_u32 v14, v14, 5, v97")
    e(f"  ds_write_b32 v98, v13 offset:{L_LIST0+4*j}")
    e(f"  ds_write_b32 v98, v14 offset:{L_LIST1+4*j}")
L("K1_LD")
e("  s_mov_b64 exec, -1")
e("  v_add_u32 v4, v4, v7")
e("  s_waitcnt lgkmcnt(0)")
e("  s_barrier")
e("  s_cmp_eq_u32 s62, 0")
e("  s_cbranch_scc1 K1_P3")
e("  s_mov_b32 s62, 0")
e("  s_waitcnt vmcnt(0)")
e("  s_mov_b32 s33, 0x05040100")
e("  s_mov_b32 s34, 0x07060302")
for jl in range(4):
    for r in range(4):
        e(f"  v_perm_b32 v{BF+4*jl+r}, v{76+4*r+2+jl//2}, v{76+4*r+jl//2}, s{33+jl%2}")
e("  s_cmp_lg_u32 s14, 0")
e("  s_cbranch_scc1 K1_P2")
for i in range(4):
    for jl in range(4):
        src = XUR[i] + jl // 2
        if jl % 2 == 0:
            e(f"  v_lshlrev_b32 v{ACC+4*jl+i}, 16, v{src}")
        else:
            e(f"  v_and_b32 v{ACC+4*jl+i}, s41, v{src}")
e("  s_branch K1_P3")
L("K1_P2")
for r in range(16):
    e(f"  v_mov_b32 v{ACC+r}, 0")
L("K1_P3")
if 'T' in X:
    e("  s_memtime s[72:73]")
e("  s_add_u32 s38, s37, 15")
e("  s_lshr_b32 s38, s38, 4")
e("  s_mov_b32 s39, s14")
e("  s_cmp_ge_u32 s39, s38")
e("  s_cbranch_scc1 K1_RDONE")
if 'A' in X: e("  s_branch K1_RDONE")
e("  s_lshl_b32 s33, s14, 6")
e(f"  v_lshlrev_b32 v{V_LO}, 2, v1")
e(f"  v_add_u32 v{V_LO}, s33, v{V_LO}")
e(f"  v_lshlrev_b32 v{V_LR}, 4, v2")
e(f"  v_add_u32 v{V_LR}, s33, v{V_LR}")
e("  s_lshl_b32 s33, s12, 12")
e(f"  s_add_u32 s33, s33, {L_EA}")
e("  s_mov_b32 s48, s33")
e(f"  v_lshlrev_b32 v{V_AB}, 5, v1")
e(f"  v_lshl_add_u32 v{V_AB}, v2, 4, v{V_AB}")
e(f"  v_add_u32 v{V_AB}, s33, v{V_AB}")
e("  v_cmp_gt_u32 vcc, 2, v2")
e("  s_nop 1")
e(f"  v_cndmask_b32 v{V_AB}, v{V_OHC}, v{V_AB}, vcc")
e(f"  v_bfe_u32 v{V_DI}, v0, 5, 1")
e(f"  v_lshlrev_b32 v{V_DI}, 7, v{V_DI}")
e("  v_bfe_u32 v6, v0, 1, 4")
e(f"  v_lshl_add_u32 v{V_DI}, v6, 2, v{V_DI}")
e("  s_lshl_b32 s33, s14, 6")
e(f"  v_add_u32 v{V_DI}, s33, v{V_DI}")
e(f"  v_and_b32 v{V_H16}, 1, v0")
e(f"  v_lshlrev_b32 v{V_H16}, 4, v{V_H16}")
e("  s_mov_b32 s50, 0")
G = [56, 72]
A = [88, 92]
SAT = 96
SF = [98, 126]
W1 = 101
W0s = [100, 10]
RWs = [102, 6]
Z = 106

def dma_rd():
    e(f"  ds_read_b32 v{W1}, v{V_DI} offset:{L_LIST1}")
    e(f"  v_add_u32 v{V_DI}, 256, v{V_DI}")
def dma_go():
    e("  s_add_u32 s51, s48, s50")
    e("  s_mov_b32 m0, s51")
    e("  s_add_u32 s50, s50, 1024")
    e("  s_and_b32 s50, s50, 4095")
    if 'C' in X: e(f"  v_and_b32 v{W1}, 0xfe0, v{W1}")
    e(f"  v_add_u32 v{W1}, v{W1}, v{V_H16}")
    e(f"  buffer_load_dwordx4 v{W1}, s[20:23], 0 offen" + os.environ.get('EAF', '') + " lds")
def list_rd(p):
    e(f"  ds_read_b32 v{W0s[p]}, v{V_LO} offset:{L_LIST0}")
    e(f"  ds_read_b128 v[{RWs[p]}:{RWs[p]+3}], v{V_LR} offset:{L_LIST0}")
    e(f"  v_add_u32 v{V_LO}, 128, v{V_LO}")
    e(f"  v_add_u32 v{V_LR}, 128, v{V_LR}")
def gathers(q):
    rw = RWs[q]
    for i in range(4):
        e(f"  v_and_or_b32 v{rw+i}, v{rw+i}, s45, v{V_LOFF}")
        if 'D' not in X: e(f"  buffer_load_dwordx4 v[{G[q]+4*i}:{G[q]+4*i+3}], v{rw+i}, s[16:19], 0 offen")
def addrs(q):
    w0 = W0s[q]
    e(f"  v_and_b32 v{w0}, 31, v{w0}")
    e(f"  v_mad_u32_u24 v{SAT}, v{w0}, 48, v{V_SC}")
    e(f"  v_mad_u32_u24 v{SAT+1}, v{w0}, v{V_Q16}, v{V_AB}")
    e(f"  v_mad_u32_u24 v{SAT+1}, v{V_AI}, s52, v{SAT+1}")
    e("  s_add_u32 s52, s52, 1")
    e("  s_and_b32 s52, s52, 7")
def frags(q):
    e("  s_mov_b64 exec, 0xffff")
    e(f"  ds_write_b16 v{SAT}, v{V_ONE}")
    e("  s_mov_b64 exec, -1")
    e(f"  ds_read_b64 v[{SF[q]}:{SF[q]+1}], v{V_SR}")
    e("  s_mov_b64 exec, 0xffff")
    e(f"  ds_write_b16 v{SAT}, v{V_ZERO}")
    e("  s_mov_b64 exec, -1")
    e(f"  ds_read_b128 v[{A[q]}:{A[q]+3}], v{SAT+1}")

def compute(p):
    g = G[p]
    def unp(jl):
        for i in range(4):
            src = g + 4 * i + jl // 2
            if jl % 2 == 0:
                e(f"  v_lshlrev_b32 v{Z+4*jl+i}, 16, v{src}")
            else:
                e(f"  v_and_b32 v{Z+4*jl+i}, v{V_MASK}, v{src}")
    def zm(jl):
        z = Z + 4 * jl
        e(f"  v_mfma_f32_16x16x32_bf16 v[{z}:{z+3}], v[{A[p]}:{A[p]+3}], v[{BF+4*jl}:{BF+4*jl+3}], v[{z}:{z+3}]")
    unp(0); unp(1); zm(0); unp(2); zm(1); unp(3); zm(2)
    for i in range(2):
        e(f"  v_lshlrev_b32 v{g+4*i}, 16, v{g+4*i+2}")
    zm(3)
    for i in range(2, 4):
        e(f"  v_lshlrev_b32 v{g+4*i}, 16, v{g+4*i+2}")
    for i in range(4):
        e(f"  v_lshlrev_b32 v{g+4*i+1}, 16, v{g+4*i+3}")
    hreg = [0, 2, 1, 3]
    for r in range(16):
        e(f"  v_exp_f32 v{Z+r}, v{Z+r}")
    for r in range(16):
        e(f"  v_add_f32 v{Z+r}, 1.0, v{Z+r}")
    for r in range(16):
        e(f"  v_rcp_f32 v{Z+r}, v{Z+r}")
    for jl in range(4):
        z = Z + 4 * jl
        for i in range(4):
            e(f"  v_mul_f32 v{z+i}, v{z+i}, v{g+4*i+hreg[jl]}")
        e(f"  v_cvt_pk_bf16_f32 v{z}, v{z}, v{z+1}")
        e(f"  v_cvt_pk_bf16_f32 v{z+1}, v{z+2}, v{z+3}")
    e("  s_nop 0")
    for jl in range(4):
        z = Z + 4 * jl
        a = ACC + 4 * jl
        e(f"  v_mfma_f32_16x16x16_bf16 v[{a}:{a+3}], v[{SF[p]}:{SF[p]+1}], v[{z}:{z+1}], v[{a}:{a+3}]")

def step(p, nvm=5):
    q = p ^ 1
    e("  s_waitcnt lgkmcnt(0)")
    gathers(q)
    if p == 0: dma_go()
    addrs(q)
    list_rd(p)
    if p == 1: dma_rd()
    frags(q)
    e(f"  s_waitcnt vmcnt({nvm})")
    compute(p)

e("  s_mul_i32 s46, s38, 0x5556")
e("  s_lshr_b32 s46, s46, 16")
e("  s_lshl_b32 s47, s46, 1")
if 'U' in X:
    e("  s_lshr_b32 s46, s38, 2")
    e("  s_lshr_b32 s47, s38, 1")
    e("  s_add_u32 s49, s46, s47")
e("  s_mov_b32 s52, 0")
list_rd(0)
list_rd(1)
dma_rd()
e("  s_waitcnt lgkmcnt(0)")
dma_go()
dma_rd()
e("  s_waitcnt lgkmcnt(0)")
dma_go()
dma_rd()
gathers(0)
addrs(0)
if 'Q' in X:
    e("  s_lshr_b32 s33, s15, 8")
    e("  s_setprio 0")
    e("  s_cmp_lt_u32 s33, 1")
    e("  s_cbranch_scc1 K1_PQ")
    e("  s_setprio 1")
    e("  s_cmp_lt_u32 s33, 2")
    e("  s_cbranch_scc1 K1_PQ")
    e("  s_setprio 2")
    e("  s_cmp_lt_u32 s33, 3")
    e("  s_cbranch_scc1 K1_PQ")
    e("  s_setprio 3")
    L("K1_PQ")
elif 'R' in X:
    e("  s_setprio 0")
elif 'U' in X:
    e("  s_setprio 3")
else:
    e("  s_setprio 2")
e("  s_waitcnt vmcnt(5)")
frags(0)
L("K1_LOOP")
if 'U' in X:
    e("  s_cmp_lt_u32 s39, s46")
    e("  s_cbranch_scc1 K1_PR")
    e("  s_setprio 2")
    e("  s_cmp_lt_u32 s39, s47")
    e("  s_cbranch_scc1 K1_PR")
    e("  s_setprio 1")
    e("  s_cmp_lt_u32 s39, s49")
    e("  s_cbranch_scc1 K1_PR")
    e("  s_setprio 0")
elif 'Q' not in X and 'R' not in X:
    e("  s_cmp_lt_u32 s39, s46")
    e("  s_cbranch_scc1 K1_PR")
    e("  s_setprio 1")
    e("  s_cmp_lt_u32 s39, s47")
    e("  s_cbranch_scc1 K1_PR")
    e("  s_setprio 0")
L("K1_PR")
if 'I' in X:
    e("  s_memtime s[84:85]")
    e("  s_waitcnt lgkmcnt(0)")
    e("  s_sub_u32 s84, s84, s70")
    e("  s_lshr_b32 s86, s39, 2")
    e("  s_mov_b32 m0, s86")
    e("  v_writelane_b32 v14, s84, m0")
step(0)
e("  s_add_u32 s39, s39, 2")
e("  s_cmp_ge_u32 s39, s38")
e("  s_cbranch_scc1 K1_RDONE")
step(1)
e("  s_add_u32 s39, s39, 2")
e("  s_cmp_lt_u32 s39, s38")
e("  s_cbranch_scc1 K1_LOOP")
L("K1_RDONE")
e("  s_setprio 3")
if 'I' in X: e("  v_mov_b32 v127, v14")
e("  s_waitcnt vmcnt(0) lgkmcnt(0)")
if 'T' in X:
    e("  s_memtime s[74:75]")
e("  s_barrier")
e("  s_waitcnt vmcnt(0)")
e("  s_cmp_lt_i32 s36, 0")
e("  s_cbranch_scc1 K1_ROUND")
e("  s_nop 7")
e(f"  v_mul_u32_u24 v6, {4*RBS}, v2")
e("  v_lshl_add_u32 v6, v1, 2, v6")
e(f"  s_mul_i32 s33, s14, {16*RBS}")
e("  s_lshl_b32 s34, s13, 8")
e("  s_add_u32 s33, s33, s34")
e("  v_add_u32 v6, s33, v6")
for jl in range(4):
    for i in range(4):
        e(f"  ds_write_b32 v6, v{ACC+4*jl+i} offset:{i*RBS+jl*64}")
e("  s_waitcnt lgkmcnt(0)")
e("  s_barrier")
e("  v_lshrrev_b32 v6, 4, v0")
e(f"  v_mul_u32_u24 v7, {RBS}, v6")
e("  v_lshl_add_u32 v7, v1, 5, v7")
e("  ds_read_b128 v[64:67], v7")
e("  ds_read_b128 v[68:71], v7 offset:16")
e(f"  ds_read_b128 v[72:75], v7 offset:{16*RBS}")
e(f"  ds_read_b128 v[76:79], v7 offset:{16*RBS+16}")
e(f"  s_mov_b32 s33, {NLOG2E}")
e("  s_waitcnt lgkmcnt(0)")
for r in range(8):
    e(f"  v_add_f32 v{64+r}, v{64+r}, v{72+r}")
for r in range(8):
    e(f"  v_mul_f32 v{72+r}, s33, v{64+r}")
for r in range(8):
    e(f"  v_exp_f32 v{72+r}, v{72+r}")
e("  s_nop 0")
for r in range(8):
    e(f"  v_add_f32 v{72+r}, 1.0, v{72+r}")
for r in range(8):
    e(f"  v_rcp_f32 v{72+r}, v{72+r}")
e("  s_nop 0")
for r in range(8):
    e(f"  v_mul_f32 v{64+r}, v{64+r}, v{72+r}")
for r in range(4):
    e(f"  v_cvt_pk_bf16_f32 v{80+r}, v{64+2*r}, v{65+2*r}")
e("  v_lshlrev_b32 v7, 8, v6")
e("  v_lshl_add_u32 v7, v1, 4, v7")
e("  s_lshl_b32 s33, s10, 8")
e("  v_cmp_gt_u32 vcc, s11, v6")
e("  s_and_saveexec_b64 s[30:31], vcc")
e("  s_cbranch_execz K1_DONE")
e("  buffer_store_dwordx4 v[80:83], v7, s[24:27], s33 offen")
if 'T' in X:
    e("  s_waitcnt vmcnt(0)")
    e("  s_memtime s[76:77]")
    e("  s_memrealtime s[82:83]")
    e("  s_waitcnt lgkmcnt(0)")
    e("  s_mov_b32 s2, s15")
    e("  s_and_b32 s3, s2, 127")
    e("  s_cmp_lg_u32 s3, 0")
    e("  s_cbranch_scc1 K1_DONE")
    e("  s_cmp_lg_u32 s12, 0")
    e("  s_cbranch_scc1 K1_DONE")
    e("  s_lshr_b32 s3, s2, 7")
    e("  s_lshl_b32 s3, s3, 5")
    e("  v_mov_b32 v1, s3")
    e("  s_sub_u32 s72, s72, s70")
    e("  s_sub_u32 s74, s74, s70")
    e("  s_sub_u32 s76, s76, s70")
    e("  s_sub_u32 s82, s82, s78")
    e("  v_mov_b32 v2, s72")
    e("  v_mov_b32 v3, s74")
    e("  v_mov_b32 v4, s76")
    e("  v_mov_b32 v5, s82")
    e("  v_mov_b32 v6, s78")
    e("  v_mov_b32 v7, s38")
    if 'J' in X:
        e("  v_mov_b32 v3, s86")
        e("  v_mov_b32 v4, s87")
        e("  v_mov_b32 v5, s88")
        e("  v_mov_b32 v6, s89")
    if 'I' in X:
        e("  s_mov_b64 exec, 0xff")
        e("  v_mbcnt_lo_u32_b32 v8, -1, 0")
        e("  v_lshlrev_b32 v8, 2, v8")
        e("  v_add_u32 v8, v8, v1")
        e("  global_store_dword v8, v127, s[80:81] offset:256")
    e("  s_mov_b64 exec, 1")
    e("  global_store_dwordx4 v1, v[2:5], s[80:81]")
    e("  global_store_dwordx2 v1, v[6:7], s[80:81] offset:16")
L("K1_DONE")
e("  s_endpgm")

e('.section .rodata,"a"')
for name, nv in (("mpnn_prep_kernel", 192), ("mpnn_main_kernel", 128)):
    e(".p2align 6")
    e(f".amdhsa_kernel {name}")
    e(f"  .amdhsa_next_free_vgpr {nv}")
    e("  .amdhsa_next_free_sgpr 96")
    e(f"  .amdhsa_accum_offset {nv}")
    e("  .amdhsa_group_segment_fixed_size 0")
    e("  .amdhsa_kernarg_size 80")
    e("  .amdhsa_user_sgpr_count 2")
    e("  .amdhsa_user_sgpr_kernarg_segment_ptr 1")
    e("  .amdhsa_system_sgpr_workgroup_id_x 1")
    e(".end_amdhsa_kernel")

path = sys.argv[1] if len(sys.argv) > 1 else "standalone__edge_featured_mpnn_egc__graph.s"
open(path, "w").write("\n".join(out) + "\n")
print("wrote", path, "WS_END", WS_END, "K1_LDS", K1_LDS)
```
